```python
import torch

def _softmax(x, axis=-1):
    return torch.softmax(x, dim=axis)
def _gelu(x):
    return torch.nn.functional.gelu(x, approximate="tanh")
def _silu(x):
    return torch.nn.functional.silu(x)
def _sigmoid(x):
    return torch.sigmoid(x)
def _layernorm(x, axis=-1, eps=1e-5):
    m = x.mean(dim=axis, keepdim=True)
    v = x.var(dim=axis, keepdim=True, unbiased=False)
    return (x - m) / torch.sqrt(v + eps)
def _scatter_add(tgt, idx, src, axis=0):
    return tgt.clone().index_add_(axis, idx, src)
def _segment_sum(src, seg, n):
    out = torch.zeros((n,) + src.shape[1:], dtype=src.dtype)
    return out.index_add_(0, seg, src)
def _pad(x, pw):
    flat = tuple(v for pair in reversed(pw) for v in pair)
    return torch.nn.functional.pad(x, flat)

kernel_name = 'interleave_layers__sliding_block__geglu_ffn__prompt'

def setup_inputs():

    _w = (lambda a: (lambda t: t.to(torch.bfloat16) if t.is_floating_point() else t)(torch.as_tensor(a)))
    def _A_setup():
        B, S, D = 1, 2048, 512
        return {
            "x": _w((lambda *s: torch.randn(*s, dtype=torch.bfloat16) * 0.05)(B, S, D)),
            "wqkv": _w((lambda *s: torch.randn(*s, dtype=torch.bfloat16) * 0.05)(D, 3 * D)),
            "wo": _w((lambda *s: torch.randn(*s, dtype=torch.bfloat16) * 0.05)(D, D)),
        }
    _A_in = _A_setup()

    def _B_setup():
        B, S, D, F = 1, 2048, 512, 1792
        return {
            "x": _w((lambda *s: torch.randn(*s, dtype=torch.bfloat16) * 0.05)(B, S, D)),
            "w_gate": _w((lambda *s: torch.randn(*s, dtype=torch.bfloat16) * 0.05)(D, F)),
            "w_up": _w((lambda *s: torch.randn(*s, dtype=torch.bfloat16) * 0.05)(D, F)),
            "w_down": _w((lambda *s: torch.randn(*s, dtype=torch.bfloat16) * 0.05)(F, D)),
        }
    _B_in = _B_setup()

    return {
        "A_x": _A_in["x"],
        "A_wqkv": _A_in["wqkv"],
        "A_wo": _A_in["wo"],
        "B_x": _B_in["x"],
        "B_w_gate": _B_in["w_gate"],
        "B_w_up": _B_in["w_up"],
        "B_w_down": _B_in["w_down"],
    }

def reference(A_x, A_wqkv, A_wo, B_x, B_w_gate, B_w_up, B_w_down):
    def _A_ref(x, wqkv, wo):
        B, S, D = x.shape
        H = 32; Dh = D // H; W = 256
        qkv = (lambda x, *d: x.permute(*d))((x @ wqkv).reshape(B, S, 3, H, Dh), 2, 0, 3, 1, 4)
        q, k, v = qkv[0], qkv[1], qkv[2]
        scores = torch.einsum("bhqd,bhkd->bhqk", q, k) * (Dh ** -0.5)
        idx = torch.arange(S)
        mask = (idx[:, None] - idx[None, :] >= 0) & (idx[:, None] - idx[None, :] < W)
        scores = torch.where(mask[None, None], scores, -1e9)
        p = _softmax(scores, axis=-1)
        o = torch.einsum("bhqk,bhkd->bhqd", p, v)
        return (lambda x, *d: x.permute(*d))(o, 0, 2, 1, 3).reshape(B, S, D) @ wo

    def _B_ref(x, w_gate, w_up, w_down):
        return (_gelu(x @ w_gate) * (x @ w_up)) @ w_down

    x = A_x
    x = x + _A_ref(_layernorm(x, axis=-1), A_wqkv, A_wo)
    x = x + _B_ref(_layernorm(x, axis=-1), B_w_gate, B_w_up, B_w_down)
    x = x + _A_ref(_layernorm(x, axis=-1), A_wqkv, A_wo)
    x = x + _B_ref(_layernorm(x, axis=-1), B_w_gate, B_w_up, B_w_down)
    return x
```

```python
import re

REG_RE = re.compile(r'^(-)?(abs\()?([vas])(?:(\d+)|\[(\d+):(\d+)\])\)?$')

def parse_reg(tok):
    tok = tok.strip()
    if tok in ('vcc',): return [('s', 106), ('s', 107)]
    if tok == 'exec': return [('s', 126), ('s', 127)]
    if tok == 'm0': return [('s', 124)]
    m = REG_RE.match(tok)
    if not m: return []
    f = m.group(3)
    if m.group(4) is not None: return [(f, int(m.group(4)))]
    return [(f, i) for i in range(int(m.group(5)), int(m.group(6)) + 1)]

TRANS = ('v_exp_f32', 'v_log_f32', 'v_rcp_f32', 'v_rsq_f32', 'v_sqrt_f32', 'v_sin_f32', 'v_cos_f32')

class Ins:
    __slots__ = ('text', 'op', 'kind', 'wr', 'rd', 'srcc', 'ab', 'passes', 'ws', 'wide_store', 'lds_dma')
    def __init__(self, text):
        self.text = text
        t = text.split(';')[0].strip()
        parts = t.split(None, 1)
        self.op = parts[0]
        ops = []
        if len(parts) > 1:
            rest = parts[1]
            cur = ''; depth = 0
            for ch in rest:
                if ch in '[(': depth += 1
                if ch in '])': depth -= 1
                if ch == ',' and depth == 0:
                    ops.append(cur.strip()); cur = ''
                else: cur += ch
            ops.append(cur.strip())
        mods = []
        if ops:
            sp = ops[-1].split()
            if len(sp) > 1:
                ops[-1] = sp[0]; mods = sp[1:]
        op = self.op
        self.wr = []; self.rd = []; self.srcc = []; self.ab = []; self.passes = 0; self.ws = 1
        self.wide_store = False; self.lds_dma = False
        R = [parse_reg(o) for o in ops]
        allr = lambda lst: [x for l in lst for x in l]
        if op.startswith('v_mfma'):
            self.kind = 'mfma'
            self.wr = R[0]; self.ab = R[1] + R[2]; self.srcc = R[3]; self.rd = self.ab + self.srcc
            self.passes = 8 if '32x32' in op else 4
        elif op.startswith('v_cmp'):
            self.kind = 'valu'; self.wr = R[0]; self.rd = allr(R[1:])
        elif op.startswith('v_permlane') and 'swap' in op:
            self.kind = 'valu'; self.wr = R[0] + R[1]; self.rd = R[0] + R[1]
        elif op.startswith('v_'):
            self.kind = 'valu'; self.wr = R[0]; self.rd = allr(R[1:])
            if op.startswith(('v_fmac', 'v_dot2c', 'v_pk_fmac')): self.rd = self.rd + R[0]
            if op.startswith(('v_add_co', 'v_sub_co', 'v_addc_co')): self.wr = R[0] + R[1]; self.rd = allr(R[2:])
        elif op.startswith(('buffer_load', 'global_load')):
            self.kind = 'vmem'
            if 'lds' in mods or '_lds_' in op:
                self.lds_dma = True; self.rd = allr(R) + [('s', 124)]
            else:
                self.wr = R[0]; self.rd = allr(R[1:])
        elif op.startswith(('buffer_store', 'global_store', 'buffer_atomic', 'global_atomic')):
            self.kind = 'vmem'; self.rd = allr(R)
            self.wide_store = op.endswith(('x3', 'x4'))
        elif op.startswith('ds_read') or op.startswith('ds_bpermute') or op.startswith('ds_swizzle'):
            self.kind = 'ds'; self.wr = R[0]; self.rd = allr(R[1:])
        elif op.startswith('ds_'):
            self.kind = 'ds'; self.rd = allr(R)
        elif op == 's_nop':
            self.kind = 'nop'; self.ws = int(ops[0], 0) + 1
        elif op.startswith('s_'):
            self.kind = 'salu'
            if op.startswith(('s_cmp', 's_cbranch', 's_branch', 's_waitcnt', 's_barrier', 's_endpgm', 's_setprio', 's_sleep')):
                self.rd = allr(R)
            else:
                self.wr = R[0] if R else []; self.rd = allr(R[1:])
        else:
            raise ValueError('unknown instr ' + text)

def parse_reg_list(text, idxs):
    ops = [o.strip() for o in text.split(';')[0].split(None, 1)[1].split(',')]
    out = []
    for i in idxs:
        if i < len(ops): out += parse_reg(ops[i].split()[0])
    return out

def need(p, c):
    n = 0
    pw = set(p.wr);
    cr = set(c.rd); cw = set(c.wr)
    if p.kind == 'valu':
        vw = {x for x in pw if x[0] in 'va'}
        sw = {x for x in pw if x[0] == 's'}
        if c.kind == 'mfma' and vw & cr: n = max(n, 2)
        if c.op.startswith('v_permlane') and vw & cr: n = max(n, 2)
        if c.op.startswith(('v_readfirstlane', 'v_readlane')) and vw & cr: n = max(n, 1)
        if p.op in TRANS and c.kind == 'valu' and c.op not in TRANS and vw & (cr | cw): n = max(n, 1)
        if p.op in TRANS and c.kind != 'valu' and vw & cr: n = max(n, 1)
        if p.op.startswith('v_dot'):
            if c.op == p.op:
                ab = set(parse_reg_list(c.text, (1, 2)))
                if vw & ab: n = max(n, 3)
            elif vw & (cr | cw): n = max(n, 3)
        if sw & cr:
            if c.kind == 'vmem': n = max(n, 5)
            elif c.kind == 'valu': n = max(n, 2)
            elif c.kind == 'salu': n = max(n, 1)
        if 'dpp' in c.text or 'row_' in c.text:
            if vw & cr: n = max(n, 2)
        if ('sel' in p.text or 'op_sel' in p.text) and c.kind == 'valu' and vw & (cr | cw): n = max(n, 1)
    if p.kind == 'mfma':
        big = {8: 12, 4: 8}[p.passes]
        if c.kind == 'mfma':
            if pw & set(c.ab): n = max(n, big)
            if pw & set(c.srcc):
                if set(c.srcc) == pw and c.passes == p.passes: pass
                else: n = max(n, {8: 10, 4: 6}[p.passes])
            if pw & cw and not (set(c.srcc) == pw): n = max(n, big)
        else:
            if pw & (cr | cw): n = max(n, big)
            if c.kind == 'valu' and set(p.srcc) & cw: n = max(n, {8: 7, 4: 3}[p.passes])
            if c.kind in ('vmem', 'ds') and set(p.srcc) & cw: n = max(n, {8: 7, 4: 3}[p.passes])
    if p.kind == 'salu':
        if ('s', 124) in pw and c.lds_dma: n = max(n, 1)
    if p.kind == 'vmem' and p.wide_store:
        if set(p.rd) & cw: n = max(n, 2)
    return n

class Asm:
    def __init__(self):
        self.lines = []
        self.hist = []
        self.nlabel = 0
        self.count = 0
    def raw(self, s):
        self.lines.append(s)
    def comment(self, s):
        self.lines.append('    ; ' + s)
    def label(self, name, barrier_nops=True):
        self.lines.append(name + ':')
    def flush_hazards(self):
        self.e('s_nop 15'); self.e('s_nop 3')
    def e(self, text):
        for t in text.split('\n'):
            t = t.strip()
            if not t: continue
            self._e1(t)
    def _e1(self, text):
        ins = Ins(text)
        dist = 0; req = 0
        for p in reversed(self.hist):
            nd = need(p, ins)
            if nd > dist: req = max(req, nd - dist)
            dist += p.ws
            if dist >= 24: break
        while req > 0:
            k = min(req, 16)
            nop = Ins(f's_nop {k-1}')
            self.lines.append(f'    s_nop {k-1}')
            self.hist.append(nop); req -= k
        self.lines.append('    ' + text)
        self.hist.append(ins)
        self.count += 1
        if len(self.hist) > 64: self.hist = self.hist[-48:]
    def text(self):
        return '\n'.join(self.lines) + '\n'

def vr(a, n=1):
    return f'v{a}' if n == 1 else f'v[{a}:{a+n-1}]'
def sr(a, n=1):
    return f's{a}' if n == 1 else f's[{a}:{a+n-1}]'

def kernel_header(a, name):
    a.raw(f'.globl {name}\n.p2align 8\n.type {name},@function\n{name}:')
    a.hist = []

def kernel_desc(name, vgpr, sgpr=96, accum=None):
    accum = accum if accum is not None else ((vgpr + 3) // 4) * 4
    return f'''.section .rodata,"a"
.p2align 6
.amdhsa_kernel {name}
  .amdhsa_next_free_vgpr {vgpr}
  .amdhsa_next_free_sgpr {sgpr}
  .amdhsa_accum_offset {accum}
  .amdhsa_group_segment_fixed_size 0
  .amdhsa_kernarg_size 80
  .amdhsa_user_sgpr_count 2
  .amdhsa_user_sgpr_kernarg_segment_ptr 1
  .amdhsa_system_sgpr_workgroup_id_x 1
.end_amdhsa_kernel
.text
'''
```

```python
from asmlib import *
MB = 1 << 20
WS_Q = 0; WS_K = 2*MB; WS_V = 4*MB; WS_O = 6*MB; WS_X1 = 8*MB; WS_H = 10*MB; WS_X2 = 18*MB
WS_BYTES = 256*MB
S = 2048; D = 512; F = 1792
KA_X = 0; KA_WQKV = 8; KA_WO = 16; KA_WG = 32; KA_WU = 40; KA_WD = 48; KA_OUT = 56; KA_DBG = 64; KA_WS = 72

class VM:
    def __init__(self): self.q = []
    def issue(self, tag): self.q.append(tag)
    def wait_n(self, tags):
        last = -1
        for i, t in enumerate(self.q):
            if t in tags: last = i
        n = len(self.q) - 1 - last
        self.q = self.q[last+1:]
        return min(n, 63)

def srd(a, d, base, nbytes):
    a.e(f's_mov_b32 s{d}, s{base}')
    a.e(f's_and_b32 s{d+1}, s{base+1}, 0xffff')
    a.e(f's_mov_b32 s{d+2}, {nbytes}')
    a.e(f's_mov_b32 s{d+3}, 0x00020000')

def srd_off(a, d, base, off, nbytes):
    a.e(f's_add_u32 s{d}, s{base}, {off}')
    a.e(f's_addc_u32 s{d+1}, s{base+1}, 0')
    a.e(f's_and_b32 s{d+1}, s{d+1}, 0xffff')
    a.e(f's_mov_b32 s{d+2}, {nbytes}')
    a.e(f's_mov_b32 s{d+3}, 0x00020000')

def bf16_round(a, dst, src):
    a.e(f'v_cvt_pk_bf16_f32 v{dst}, v{src}, v{src}')
    a.e(f'v_lshlrev_b32 v{dst}, 16, v{dst}')

def ln_stats(a, s1, s2, t0, t1, mb, rstd):
    a.e(f'v_mov_b32 v{t0}, v{s1}')
    a.e(f'v_mov_b32 v{t1}, v{s2}')
    a.e(f'v_permlane32_swap_b32 v{t0}, v{s1}')
    a.e(f'v_permlane32_swap_b32 v{t1}, v{s2}')
    a.e(f'v_add_f32 v{s1}, v{s1}, v{t0}')
    a.e(f'v_add_f32 v{s2}, v{s2}, v{t1}')
    a.e(f'v_mul_f32 v{s1}, 0x3b000000, v{s1}')
    a.e(f'v_mul_f32 v{s2}, 0x3b000000, v{s2}')
    a.e(f'v_fma_f32 v{s2}, -v{s1}, v{s1}, v{s2}')
    a.e(f'v_max_f32 v{s2}, 0, v{s2}')
    bf16_round(a, mb, s1)
    bf16_round(a, t0, s2)
    a.e(f'v_add_f32 v{t0}, 0x3727c5ac, v{t0}')
    bf16_round(a, t0, t0)
    a.e(f'v_sqrt_f32 v{t0}, v{t0}')
    bf16_round(a, t0, t0)
    a.e(f'v_rcp_f32 v{rstd}, v{t0}')
```

```python
from common import *

def gen_k1(name, layer):
    a = Asm()
    first = (layer == 0)
    NS = 5 if first else 6
    STG = 24576
    XS = NS * STG
    SCR = XS + (32768 if first else 0)
    LDS = SCR + 4096
    kernel_header(a, name)
    a.e('s_cmp_ge_u32 s2, 256')
    a.e(f's_cbranch_scc1 {name}_end')
    a.e(f's_load_dwordx2 s[4:5], s[0:1], {KA_X}')
    a.e(f's_load_dwordx2 s[6:7], s[0:1], {KA_WQKV}')
    a.e(f's_load_dwordx2 s[8:9], s[0:1], {KA_WS}')
    a.e('v_lshrrev_b32 v1, 6, v0')
    a.e('v_and_b32 v0, 63, v0')
    a.e('v_readfirstlane_b32 s30, v1')
    a.e('s_and_b32 s31, s2, 7')
    a.e('s_lshr_b32 s32, s2, 3')
    a.e('s_lshr_b32 s33, s31, 1')
    a.e('s_lshl_b32 s33, s33, 3')
    a.e('s_and_b32 s34, s32, 7')
    a.e('s_add_u32 s33, s33, s34')
    a.e('s_and_b32 s34, s31, 1')
    a.e('s_lshl_b32 s34, s34, 2')
    a.e('s_lshr_b32 s35, s32, 3')
    a.e('s_add_u32 s34, s34, s35')
    a.e('s_and_b32 s35, s30, 1')
    a.e('s_lshr_b32 s36, s30, 1')
    a.e('s_lshl_b32 s37, s33, 1')
    a.e('s_add_u32 s37, s37, s35')
    A0 = 8
    B0 = A0 + 128
    VT = B0 + 96
    vD0, vD1, vTR0, vTR1, vTR2, vOA, vS1a, vS1b, vS2a, vS2b, vC = range(VT, VT+11)
    vC0, vC1, vC2 = VT+11, VT+12, VT+13
    vONE = VT+14
    vX = VT+15
    NV = VT + 24
    assert NV <= 256, NV
    a.e(f'v_lshrrev_b32 v2, 3, v0')
    a.e(f'v_mul_u32_u24 v{vD0}, 3072, v2')
    a.e(f'v_and_b32 v3, 7, v0')
    a.e(f'v_lshrrev_b32 v4, 2, v0')
    a.e(f'v_and_b32 v4, 4, v4')
    a.e(f'v_xor_b32 v3, v3, v4')
    a.e(f'v_lshl_add_u32 v{vD0}, v3, 4, v{vD0}')
    a.e(f'v_add_u32 v{vD1}, {24576-1024}, v{vD0}')
    a.e('v_lshrrev_b32 v2, 5, v0')
    a.e('v_bfe_u32 v3, v0, 2, 2')
    a.e('v_lshl_add_u32 v4, v2, 3, v3')
    a.e(f'v_lshlrev_b32 v{vTR0}, 7, v4')
    a.e('v_bfe_u32 v4, v0, 3, 1')
    a.e('v_xor_b32 v4, s36, v4')
    a.e(f'v_lshl_add_u32 v{vTR0}, v4, 6, v{vTR0}')
    a.e('v_bfe_u32 v4, v0, 4, 1')
    a.e(f'v_lshl_add_u32 v{vTR0}, v4, 5, v{vTR0}')
    a.e('v_and_b32 v4, 3, v0')
    a.e(f'v_lshl_add_u32 v{vTR0}, v4, 3, v{vTR0}')
    a.e(f'v_add_u32 v{vTR1}, {2*STG}, v{vTR0}')
    a.e(f'v_add_u32 v{vTR2}, {4*STG}, v{vTR0}')
    a.e(f'v_lshlrev_b32 v{vOA}, 4, v0')
    for r in (vS1a, vS1b, vS2a, vS2b, vC0, vC1, vC2): a.e(f'v_mov_b32 v{r}, 0')
    a.e(f'v_mov_b32 v{vONE}, 0x3f803f80')
    for i in range(48): a.e(f'v_accvgpr_write_b32 a{i}, 0')
    a.e('s_waitcnt lgkmcnt(0)')
    if first: srd(a, 12, 4, S*D*2)
    else: srd_off(a, 12, 8, WS_X2, S*D*2)
    srd(a, 16, 6, D*3*D*2)
    srd(a, 20, 8, 6*MB)
    a.e('s_lshl_b32 s38, s37, 15')
    a.e('s_mul_i32 s39, s30, %d' % (16*3072))
    a.e('s_lshl_b32 s40, s34, 7')
    a.e('s_add_u32 s39, s39, s40')
    a.e('s_lshl_b32 s41, s30, 11')
    vm = VM()
    def dma(s):
        slot = s % NS
        for p in range(3):
            a.e(f's_add_u32 m0, s41, {slot*STG + p*8192}')
            a.e(f's_add_u32 s42, s39, {s*64*3072 + p*1024}')
            a.e(f'buffer_load_dwordx4 v{vD0}, s[16:19], s42 offen lds'); vm.issue(('D', s))
            a.e(f'buffer_load_dwordx4 v{vD1}, s[16:19], s42 offen offset:1024 lds'); vm.issue(('D', s))
    def aload_t32(g):
        a.e(f's_add_u32 s43, s38, {g*4096}')
        for q in range(4):
            ks = 4*g+q
            a.e(f'buffer_load_dwordx4 {vr(A0+4*ks,4)}, v{vOA}, s[12:15], s43 offen offset:{q*1024}'); vm.issue(('A', g))
    if first:
        vXL, vXW0, vXR = vX, vX+1, vX+5
        a.e('v_lshrrev_b32 v2, 4, v0')
        a.e('v_and_b32 v3, 15, v0')
        a.e(f'v_lshlrev_b32 v{vXL}, 10, v2')
        a.e(f'v_lshl_add_u32 v{vXL}, v3, 4, v{vXL}')
        a.e('s_lshl_b32 s44, s30, 13')
        a.e(f's_add_u32 s44, s44, {XS}')
        for aa in range(4):
            a.e(f'v_add_u32 v4, {4*aa}, v2')
            a.e('v_xor_b32 v4, v4, v3')
            a.e('v_lshlrev_b32 v4, 4, v4')
            a.e(f'v_lshl_add_u32 v4, v2, 8, v4')
            a.e(f'v_add_u32 v4, {aa*1024}, v4')
            a.e(f'v_add_u32 v{vXW0+aa}, s44, v4')
        a.e('v_and_b32 v4, 31, v0')
        a.e('v_lshrrev_b32 v5, 5, v0')
        a.e('v_and_b32 v6, 15, v0')
        a.e('v_xor_b32 v5, v5, v6')
        a.e('v_lshlrev_b32 v5, 4, v5')
        a.e('v_lshl_add_u32 v5, v4, 8, v5')
        a.e(f'v_add_u32 v{vXR}, s44, v5')
        def aload_rm(j):
            for i in range(8):
                a.e(f's_add_u32 s43, s38, {i*4096}')
                a.e(f'buffer_load_dwordx4 {vr(A0+32*j+4*i,4)}, v{vXL}, s[12:15], s43 offen offset:{j*256}'); vm.issue(('X', j))
        dma(0); aload_rm(0); dma(1); aload_rm(1); dma(2); aload_rm(2); dma(3); aload_rm(3); dma(4)
        for j in range(4):
            a.e(f's_waitcnt vmcnt({vm.wait_n([("X", j)])})')
            for i in range(8):
                a.e(f'ds_write_b128 v{vXW0+(i&3)}, {vr(A0+32*j+4*i,4)} offset:{(i>>2)*4096}')
            a.e('s_waitcnt lgkmcnt(0)')
            for k8 in range(8):
                a.e(f'v_xor_b32 v{vX+6+(k8&1)}, {k8<<5}, v{vXR}')
                a.e(f'ds_read_b128 {vr(A0+32*j+4*k8,4)}, v{vX+6+(k8&1)}')
            a.e('s_waitcnt lgkmcnt(0)')
    else:
        for s in range(8):
            if s < NS: dma(s)
            aload_t32(s)
    def reads(s):
        slot = s % NS
        base = (vTR0, vTR1, vTR2)[slot >> 1]
        bs = B0 + 48*(s & 1)
        out = []
        for k4 in range(4):
            for p in range(3):
                for h2 in range(2):
                    off = (slot & 1)*STG + p*8192 + k4*2048 + h2*512
                    out.append(f'ds_read_b64_tr_b16 {vr(bs + (k4*3+p)*4 + 2*h2, 2)}, v{base} offset:{off}')
        return out
    a.e(f's_waitcnt vmcnt({vm.wait_n([("D", 0), ("A", 0)])})')
    a.e('s_barrier')
    for t in reads(0): a.e(t)
    for s in range(8):
        a.e('s_waitcnt lgkmcnt(0)')
        rd = []
        if s < 7:
            a.e(f's_waitcnt vmcnt({vm.wait_n([("D", s+1), ("A", s+1), ("A", s)])})')
            a.e('s_barrier')
            if s + NS < 8: dma(s + NS)
            rd = reads(s+1)
        else:
            a.e(f's_waitcnt vmcnt({vm.wait_n([("A", s)])})')
        bs = B0 + 48*(s & 1)
        for k4 in range(4):
            ks = 4*s + k4
            xa = A0 + 4*ks
            valu = []
            for q in range(4):
                valu.append(f'v_dot2_f32_bf16 v{(vS1a, vS1b)[q&1]}, v{xa+q}, v{vONE}, v{(vS1a, vS1b)[q&1]}')
                valu.append(f'v_dot2_f32_bf16 v{(vS2a, vS2b)[q&1]}, v{xa+q}, v{xa+q}, v{(vS2a, vS2b)[q&1]}')
            for p in range(3):
                for q in range(4):
                    c = (vC0, vC1, vC2)[p]
                    valu.append(f'v_dot2_f32_bf16 v{c}, v{bs+(k4*3+p)*4+q}, v{vONE}, v{c}')
            cs = valu[8:]; st = valu[:8]
            cs = [cs[p*4+q] for q in range(4) for p in range(3)]
            mix = []
            while st or cs:
                if cs: mix.append(cs.pop(0))
                if st: mix.append(st.pop(0))
                if cs and len(cs) > len(st): mix.append(cs.pop(0))
            for p in range(3):
                wb = bs + (k4*3+p)*4
                if p < 2: a.e(f'v_mfma_f32_32x32x16_bf16 a[{16*p}:{16*p+15}], {vr(wb,4)}, {vr(xa,4)}, a[{16*p}:{16*p+15}]')
                else:     a.e(f'v_mfma_f32_32x32x16_bf16 a[32:47], {vr(xa,4)}, {vr(wb,4)}, a[32:47]')
                for _ in range(2):
                    if rd: a.e(rd.pop(0))
                for _ in range(7 if p < 2 else 6):
                    if mix: a.e(mix.pop(0))
            assert not mix
        assert not rd
    E = B0
    vMB, vRS, vT0, vT1 = E, E+1, E+2, E+3
    a.e(f'v_add_f32 v{vS1a}, v{vS1a}, v{vS1b}')
    a.e(f'v_add_f32 v{vS2a}, v{vS2a}, v{vS2b}')
    ln_stats(a, vS1a, vS2a, vT0, vT1, vMB, vRS)
    for c in (vC0, vC1, vC2):
        a.e(f'v_mov_b32 v{vT0}, v{c}')
        a.e(f'v_permlane32_swap_b32 v{vT0}, v{c}')
        a.e(f'v_add_f32 v{c}, v{c}, v{vT0}')
    vSA, vSR = E+4, E+5
    a.e('s_lshl_b32 s44, s30, 10')
    a.e(f's_add_u32 s44, s44, {SCR}')
    a.e('v_and_b32 v2, 31, v0')
    a.e('v_lshlrev_b32 v2, 2, v2')
    a.e(f'v_add_u32 v{vSA}, s44, v2')
    a.e('v_lshrrev_b32 v3, 5, v0')
    a.e('v_lshlrev_b32 v3, 4, v3')
    a.e(f'v_add_u32 v{vSR}, s44, v3')
    a.e(f'ds_write_b32 v{vSA}, v{vC0}')
    a.e(f'ds_write_b32 v{vSA}, v{vC1} offset:128')
    a.e(f'ds_write_b32 v{vSA}, v{vMB} offset:256')
    a.e(f'ds_write_b32 v{vSA}, v{vRS} offset:384')
    CQ, CK, RM, RR = E+8, E+24, E+40, E+56
    for i, base in enumerate((CQ, CK, RM, RR)):
        for q in range(4):
            a.e(f'ds_read_b128 {vr(base+4*q,4)}, v{vSR} offset:{i*128 + q*32}')
    vQA, vVA = E+6, E+7
    a.e('s_lshl_b32 s45, s34, 2')
    a.e('s_lshl_b32 s46, s36, 1')
    a.e('s_add_u32 s45, s45, s46')
    a.e('s_lshl_b32 s45, s45, 16')
    a.e('s_lshl_b32 s46, s37, 10')
    a.e('s_add_u32 s45, s45, s46')
    a.e('v_bfe_u32 v2, v0, 4, 1')
    a.e(f'v_lshlrev_b32 v{vVA}, 16, v2')
    a.e('v_lshrrev_b32 v2, 5, v0')
    a.e(f'v_lshl_add_u32 v{vVA}, v2, 9, v{vVA}')
    a.e('v_and_b32 v2, 15, v0')
    a.e(f'v_lshl_add_u32 v{vVA}, v2, 4, v{vVA}')
    a.e('s_waitcnt lgkmcnt(0)')
    T = A0
    a.e(f'v_sub_f32 v{vT0}, 0, v{vMB}')
    for p in range(2):
        cb = (CQ, CK)[p]
        for r in range(16):
            a.e(f'v_accvgpr_read_b32 v{T+r}, a{16*p+r}')
        for r in range(16):
            a.e(f'v_fma_f32 v{T+r}, v{vT0}, v{cb+r}, v{T+r}')
        for r in range(16):
            a.e(f'v_mul_f32 v{T+r}, v{T+r}, v{vRS}')
        for r in range(8):
            a.e(f'v_cvt_pk_bf16_f32 v{T+16+r}, v{T+2*r}, v{T+2*r+1}')
        a.e(f's_add_u32 s46, s45, {p*2*MB}')
        a.e(f's_add_u32 s47, s46, 65536')
        a.e(f'buffer_store_dwordx4 {vr(T+16,4)}, v{vOA}, s[20:23], s46 offen')
        a.e(f'buffer_store_dwordx4 {vr(T+20,4)}, v{vOA}, s[20:23], s47 offen')
        T += 24
    a.e(f'v_sub_f32 v{vT1}, 0, v{vC2}')
    for r in range(16):
        a.e(f'v_accvgpr_read_b32 v{T+r}, a{32+r}')
    for r in range(16):
        a.e(f'v_fma_f32 v{T+r}, v{vT1}, v{RM+r}, v{T+r}')
    for r in range(16):
        a.e(f'v_mul_f32 v{T+r}, v{T+r}, v{RR+r}')
    for r in range(8):
        a.e(f'v_cvt_pk_bf16_f32 v{T+16+r}, v{T+2*r}, v{T+2*r+1}')
    a.e(f's_add_u32 s46, s45, {4*MB}')
    a.e(f'buffer_store_dwordx4 {vr(T+16,4)}, v{vVA}, s[20:23], s46 offen')
    a.e(f'buffer_store_dwordx4 {vr(T+20,4)}, v{vVA}, s[20:23], s46 offen offset:256')
    a.label(f'{name}_end')
    a.e('s_endpgm')
    acc_off = ((NV + 3)//4)*4
    desc = kernel_desc(name, acc_off + 48, 96, acc_off)
    return a.text(), desc, f'; @launch kernel={name} grid=(256,1,1) block=(256,1,1) lds={LDS}'
```

```python
from common import *
import math

def gen_k2(name):
    a = Asm()
    kernel_header(a, name)
    a.e('s_cmp_ge_u32 s2, 256')
    a.e(f's_cbranch_scc1 {name}_end')
    a.e(f's_load_dwordx2 s[8:9], s[0:1], {KA_WS}')
    a.e('v_lshrrev_b32 v1, 6, v0')
    a.e('v_and_b32 v0, 63, v0')
    a.e('v_readfirstlane_b32 s30, v1')
    a.e('s_and_b32 s31, s2, 7')
    a.e('s_lshl_b32 s31, s31, 2')
    a.e('s_bfe_u32 s32, s2, 0x20003')
    a.e('s_add_u32 s31, s31, s32')
    a.e('s_lshr_b32 s32, s2, 5')
    a.e('s_lshl_b32 s32, s32, 3')
    a.e('s_add_u32 s32, s32, s30')
    S0 = 8
    K0 = S0 + 144
    V0 = K0 + 36
    Q0 = V0 + 36
    M0 = Q0 + 4
    VT = M0 + 8
    vOA, vD, vMX, vT0, vT1, vNC, vCC, vONA = range(VT, VT+8)
    ONE = VT + 8
    NV = ONE + 4
    assert NV <= 256 and ONE % 2 == 0, NV
    ACC1, ACC2 = K0, K0 + 16
    ACCL = S0
    a.e(f'v_lshlrev_b32 v{vOA}, 4, v0')
    a.e('s_lshl_b32 s33, s31, 16')
    a.e('s_lshl_b32 s34, s32, 10')
    a.e('s_add_u32 s33, s33, s34')
    a.e('s_waitcnt lgkmcnt(0)')
    srd(a, 12, 8, 8*MB)
    vm = VM()
    a.e(f'buffer_load_dwordx4 {vr(Q0,4)}, v{vOA}, s[12:15], s33 offen'); vm.issue('Q')
    order = [8, 7, 6, 5, 4, 3, 2, 1, 0]
    for grp in range(3):
        a.e(f's_add_u32 s{36+grp}, s33, {WS_K - 8192 + grp*3072}')
        a.e(f's_add_u32 s{40+grp}, s33, {WS_V - 8192 + grp*3072}')
    for t in order:
        a.e(f'buffer_load_dwordx4 {vr(K0+4*t,4)}, v{vOA}, s[12:15], s{36+t//3} offen offset:{(t%3)*1024}'); vm.issue(('K', t))
    for t in range(9):
        a.e(f'buffer_load_dwordx4 {vr(V0+4*t,4)}, v{vOA}, s[12:15], s{40+t//3} offen offset:{(t%3)*1024}'); vm.issue(('V', t))
    a.e('v_and_b32 v2, 31, v0')
    a.e('v_lshrrev_b32 v3, 5, v0')
    a.e('v_lshlrev_b32 v3, 2, v3')
    a.e(f'v_sub_u32 v{vD}, v2, v3')
    for r in range(16):
        kl = (r & 3) + 8*(r >> 2)
        a.e(f'v_cmp_le_i32 s[{48+2*r}:{49+2*r}], {kl}, v{vD}')
    a.e(f'v_mov_b32 v{vT0}, 0xffff')
    a.e(f'v_mov_b32 v{vT1}, 0xffff0000')
    for j in range(8):
        a.e(f'v_cndmask_b32 v2, 0, v{vT0}, s[{48+4*j}:{49+4*j}]')
        a.e(f'v_cndmask_b32 v3, 0, v{vT1}, s[{50+4*j}:{51+4*j}]')
        a.e(f'v_or_b32 v{M0+j}, v2, v3')
    for i in range(4): a.e(f'v_mov_b32 v{ONE+i}, 0x3f803f80')
    c = 0.25 * math.log2(math.e)
    import struct
    cbits = struct.unpack('<I', struct.pack('<f', c))[0]
    a.e(f'v_mov_b32 v{vCC}, 0x{cbits:08x}')
    for t in order:
        a.e(f's_waitcnt vmcnt({vm.wait_n(["Q", ("K", t)])})')
        a.e(f'v_mfma_f32_32x32x16_bf16 {vr(S0+16*t,16)}, {vr(K0+4*t,4)}, {vr(Q0,4)}, 0')
    a.e('s_nop 7'); a.e('s_nop 7')
    a.e('s_cmp_ge_u32 s32, 8')
    a.e(f's_cbranch_scc1 {name}_full')
    for t in range(8):
        a.e(f's_cmp_ge_u32 s32, {8-t}')
        a.e(f's_cbranch_scc1 {name}_full')
        for r in range(16): a.e(f'v_mov_b32 v{S0+16*t+r}, 0xff800000')
    a.label(f'{name}_full')
    for r in range(16):
        a.e(f'v_cndmask_b32 v{S0+128+r}, v{S0+r}, v{S0+128+r}, s[{48+2*r}:{49+2*r}]')
    regs = list(range(S0+16, S0+144))
    a.e(f'v_max3_f32 v{vMX}, v{regs[0]}, v{regs[1]}, v{regs[2]}')
    a.e(f'v_max3_f32 v{vT0}, v{regs[3]}, v{regs[4]}, v{regs[5]}')
    i = 6
    tog = 0
    while i + 1 < len(regs):
        d = (vMX, vT0)[tog]; tog ^= 1
        a.e(f'v_max3_f32 v{d}, v{d}, v{regs[i]}, v{regs[i+1]}'); i += 2
    assert i == len(regs)
    a.e(f'v_max_f32 v{vMX}, v{vMX}, v{vT0}')
    a.e(f'v_mov_b32 v{vT0}, v{vMX}')
    a.e(f'v_permlane32_swap_b32 v{vT0}, v{vMX}')
    a.e(f'v_max_f32 v{vMX}, v{vMX}, v{vT0}')
    a.e(f'v_mul_f32 v{vNC}, v{vMX}, v{vCC}')
    a.e(f'v_sub_f32 v{vNC}, 0, v{vNC}')
    first = True
    def pv(acc, vt, preg):
        srcc = '0' if first else vr(acc, 16)
        a.e(f'v_mfma_f32_32x32x16_bf16 {vr(acc,16)}, {vr(vt,4)}, {vr(preg,4)}, {srcc}')
    for t in list(range(1, 9)):
        b = S0 + 16*t
        for r in range(16):
            a.e(f'v_fma_f32 v{b+r}, v{b+r}, v{vCC}, v{vNC}')
        for r in range(16):
            a.e(f'v_exp_f32 v{b+r}, v{b+r}')
        for j in range(8):
            a.e(f'v_cvt_pk_bf16_f32 v{b+j}, v{b+2*j}, v{b+2*j+1}')
        if t < 8:
            a.e(f's_waitcnt vmcnt({vm.wait_n([("V", t)])})')
            pv(ACC1, V0+4*t, b); pv(ACC2, V0+4*t, b+4)
            srcc = '0' if first else vr(ACCL, 16)
            a.e(f'v_mfma_f32_32x32x16_bf16 {vr(ACCL,16)}, {vr(ONE,4)}, {vr(b,4)}, {srcc}')
            a.e(f'v_mfma_f32_32x32x16_bf16 {vr(ACCL,16)}, {vr(ONE,4)}, {vr(b+4,4)}, {vr(ACCL,16)}')
            first = False
        else:
            a.e(f'v_mfma_f32_32x32x16_bf16 {vr(ACCL,16)}, {vr(ONE,4)}, {vr(b,4)}, {vr(ACCL,16)}')
            a.e(f'v_mfma_f32_32x32x16_bf16 {vr(ACCL,16)}, {vr(ONE,4)}, {vr(b+4,4)}, {vr(ACCL,16)}')
            for j in range(8):
                a.e(f'v_and_b32 v{b+8+j}, v{b+j}, v{M0+j}')
            a.e('s_waitcnt vmcnt(0)')
            pv(ACC1, V0+32, b+8); pv(ACC2, V0+32, b+12)
            for j in range(8):
                a.e(f'v_xor_b32 v{S0+16+j}, v{b+j}, v{b+8+j}')
            pv(ACC1, V0, S0+16); pv(ACC2, V0, S0+20)
    T = S0 + 32
    a.e('v_bfe_u32 v2, v0, 4, 1')
    a.e('v_lshlrev_b32 v2, 14, v2')
    a.e('v_lshrrev_b32 v3, 5, v0')
    a.e('v_lshl_add_u32 v2, v3, 8, v2')
    a.e('v_and_b32 v3, 15, v0')
    a.e('v_lshl_add_u32 v2, v3, 4, v2')
    a.e('s_lshl_b32 s34, s32, 15')
    a.e('s_lshl_b32 s35, s31, 9')
    a.e('s_add_u32 s34, s34, s35')
    a.e(f's_add_u32 s34, s34, {WS_O}')
    a.e(f'v_rcp_f32 v{vT0}, v{ACCL}')
    for r in range(8):
        a.e(f'v_add_f32 v{T+r}, v{ACC1+r}, v{ACC2+8+r}')
    for r in range(8):
        a.e(f'v_mul_f32 v{T+r}, v{T+r}, v{vT0}')
    for j in range(4):
        a.e(f'v_cvt_pk_bf16_f32 v{T+8+j}, v{T+2*j}, v{T+2*j+1}')
    a.e(f'buffer_store_dwordx4 {vr(T+8,4)}, v2, s[12:15], s34 offen')
    a.label(f'{name}_end')
    a.e('s_endpgm')
    desc = kernel_desc(name, NV, 96)
    return a.text(), desc, f'; @launch kernel={name} grid=(256,1,1) block=(512,1,1) lds=0'
```

```python
from common import *

def gen_k35(name, which, layer):
    a = Asm()
    K = 512 if which == 'wo' else F
    KS = K // 32
    KW = KS // 4
    kernel_header(a, name)
    a.e('s_cmp_ge_u32 s2, 256')
    a.e(f's_cbranch_scc1 {name}_end')
    a.e(f's_load_dwordx2 s[4:5], s[0:1], {KA_X}')
    a.e(f's_load_dwordx2 s[6:7], s[0:1], {KA_WO if which == "wo" else KA_WD}')
    a.e(f's_load_dwordx2 s[8:9], s[0:1], {KA_WS}')
    a.e(f's_load_dwordx2 s[10:11], s[0:1], {KA_OUT}')
    a.e('v_lshrrev_b32 v1, 6, v0')
    a.e('v_and_b32 v0, 63, v0')
    a.e('v_readfirstlane_b32 s30, v1')
    a.e('s_and_b32 s31, s2, 7')
    a.e('s_lshr_b32 s32, s2, 3')
    a.e('s_lshr_b32 s33, s31, 1')
    a.e('s_lshl_b32 s33, s33, 3')
    a.e('s_and_b32 s34, s32, 7')
    a.e('s_add_u32 s33, s33, s34')
    a.e('s_and_b32 s34, s31, 1')
    a.e('s_lshl_b32 s34, s34, 2')
    a.e('s_lshr_b32 s35, s32, 3')
    a.e('s_add_u32 s34, s34, s35')
    if which == 'wo':
        res_rm = (layer == 0); res_off = WS_X2; out_rm = False; out_off = WS_X1; a_off = WS_O
    else:
        res_rm = False; res_off = WS_X1; out_rm = (layer == 1); out_off = WS_X2; a_off = WS_H
    DEPTH = min(KW, 5)
    W0 = 8
    F0 = W0 + DEPTH*16
    VT = F0 + 32
    vOA, vW0, vW1, vE, vR = range(VT, VT+5)
    RES = VT + 6
    NV = RES + 8
    assert RES % 2 == 0 and NV <= 256
    NACC = 64 + DEPTH*16
    a.e(f'v_lshlrev_b32 v{vOA}, 4, v0')
    a.e('v_lshrrev_b32 v2, 5, v0')
    a.e('v_lshlrev_b32 v2, 14, v2')
    a.e('v_bfe_u32 v3, v0, 4, 1')
    a.e('v_lshl_add_u32 v2, v3, 12, v2')
    a.e('v_and_b32 v3, 15, v0')
    a.e(f'v_lshl_add_u32 v{vW0}, v3, 3, v2')
    a.e(f'v_add_u32 v{vW1}, 8192, v{vW0}')
    def eaddr(dst, rm):
        a.e('v_and_b32 v2, 15, v0')
        a.e('v_lshrrev_b32 v3, 4, v0')
        if rm:
            a.e('v_lshlrev_b32 v2, 10, v2')
            a.e(f'v_lshl_add_u32 v{dst}, v3, 5, v2')
        else:
            a.e('v_lshlrev_b32 v2, 4, v2')
            a.e(f'v_lshl_add_u32 v{dst}, v3, 10, v2')
    def esoff(sd, rm):
        if rm:
            a.e(f's_lshl_b32 s{sd}, s33, 16')
            a.e('s_lshl_b32 s36, s30, 14')
            a.e(f's_add_u32 s{sd}, s{sd}, s36')
            a.e('s_lshl_b32 s36, s34, 7')
            a.e(f's_add_u32 s{sd}, s{sd}, s36')
        else:
            a.e(f's_lshl_b32 s{sd}, s33, 16')
            a.e('s_lshr_b32 s36, s30, 1')
            a.e('s_lshl_b32 s36, s36, 15')
            a.e(f's_add_u32 s{sd}, s{sd}, s36')
            a.e('s_lshl_b32 s36, s34, 12')
            a.e(f's_add_u32 s{sd}, s{sd}, s36')
            a.e('s_and_b32 s36, s30, 1')
            a.e('s_lshl_b32 s36, s36, 8')
            a.e(f's_add_u32 s{sd}, s{sd}, s36')
    eaddr(vR, res_rm); eaddr(vE, out_rm)
    esoff(44, res_rm); esoff(45, out_rm)
    for i in range(64): a.e(f'v_accvgpr_write_b32 a{i}, 0')
    a.e('s_mov_b32 s46, 0x05040100')
    a.e('s_mov_b32 s47, 0x07060302')
    a.e(f's_mul_i32 s38, s33, {4*KS*1024}')
    a.e(f's_mul_i32 s39, s30, {KW*1024}')
    a.e('s_add_u32 s38, s38, s39')
    a.e(f's_mul_i32 s40, s30, {KW*32*1024}')
    a.e('s_lshl_b32 s41, s34, 7')
    a.e('s_add_u32 s40, s40, s41')
    a.e('s_waitcnt lgkmcnt(0)')
    srd_off(a, 12, 8, a_off, S*K*2)
    srd(a, 16, 6, K*D*2)
    if res_rm: srd(a, 20, 4, S*D*2)
    else: srd_off(a, 20, 8, res_off, S*D*2)
    if out_rm: srd(a, 24, 10, S*D*2)
    else: srd_off(a, 24, 8, out_off, S*D*2)
    vm = VM()
    def loads(i):
        slot = i % DEPTH
        a.e(f's_add_u32 s42, s40, {i*32768}')
        for r in range(8):
            v = vW0 if r < 4 else vW1
            a.e(f'buffer_load_dwordx2 {vr(W0+slot*16+2*r,2)}, v{v}, s[16:19], s42 offen offset:{(r&3)*1024}'); vm.issue(('L', i))
        for mt in range(4):
            a.e(f's_add_u32 s43, s38, {mt*KS*1024 + i*1024}')
            a.e(f'buffer_load_dwordx4 a[{64+slot*16+4*mt}:{64+slot*16+4*mt+3}], v{vOA}, s[12:15], s43 offen'); vm.issue(('L', i))
    for i in range(DEPTH): loads(i)
    ro = 16 if res_rm else 512
    a.e(f'buffer_load_dwordx4 {vr(RES,4)}, v{vR}, s[20:23], s44 offen'); vm.issue('R')
    a.e(f'buffer_load_dwordx4 {vr(RES+4,4)}, v{vR}, s[20:23], s44 offen offset:{ro}'); vm.issue('R')
    def perms(i):
        slot = i % DEPTH
        fb = F0 + 16*(i & 1)
        out = []
        for q in range(4):
            for p in range(2):
                lo = W0 + slot*16 + 2*(2*q) + p
                hi = W0 + slot*16 + 2*(2*q+1) + p
                out.append(f'v_perm_b32 v{fb + (2*p)*4 + q}, v{hi}, v{lo}, s46')
                out.append(f'v_perm_b32 v{fb + (2*p+1)*4 + q}, v{hi}, v{lo}, s47')
        return out
    a.e(f's_waitcnt vmcnt({vm.wait_n([("L", 0)])})')
    for t in perms(0): a.e(t)
    for i in range(KW):
        slot = i % DEPTH
        fb = F0 + 16*(i & 1)
        nxt = []
        if i + 1 < KW:
            a.e(f's_waitcnt vmcnt({vm.wait_n([("L", i+1)])})')
            nxt = perms(i+1)
        for mt in range(4):
            for j in range(4):
                acc = (mt*4 + j)*4
                a.e(f'v_mfma_f32_16x16x32_bf16 a[{acc}:{acc+3}], {vr(fb+4*j,4)}, a[{64+slot*16+4*mt}:{64+slot*16+4*mt+3}], a[{acc}:{acc+3}]')
                if nxt: a.e(nxt.pop(0))
        if i + DEPTH < KW:
            loads(i + DEPTH)
    a.e('s_lshl_b32 s36, s30, 12')
    a.e(f'v_add_u32 v2, s36, v{vOA}')
    a.e('s_nop 15')
    for mt in range(4):
        a.e(f's_cmp_eq_u32 s30, {mt}')
        a.e(f's_cbranch_scc1 {name}_sk{mt}')
        for j in range(4):
            acc = (mt*4 + j)*4
            a.e(f'ds_write_b128 v2, a[{acc}:{acc+3}] offset:{mt*16384 + j*1024}')
        a.label(f'{name}_sk{mt}')
    T = W0
    for mt in range(4):
        a.e(f's_cmp_lg_u32 s30, {mt}')
        a.e(f's_cbranch_scc1 {name}_ow{mt}')
        for x in range(16):
            a.e(f'v_accvgpr_read_b32 v{T+x}, a{mt*16+x}')
        a.label(f'{name}_ow{mt}')
    a.e('s_lshl_b32 s36, s30, 14')
    a.e(f'v_add_u32 v3, s36, v{vOA}')
    a.e('s_waitcnt lgkmcnt(0)')
    a.e('s_barrier')
    for d in range(1, 4):
        a.e(f's_add_u32 s36, s30, {d}')
        a.e('s_and_b32 s36, s36, 3')
        a.e('s_lshl_b32 s36, s36, 12')
        a.e(f'v_add_u32 v{3+d}, s36, v3')
    for d in range(1, 4):
        for j in range(4):
            a.e(f'ds_read_b128 {vr(T+16*d+4*j,4)}, v{3+d} offset:{j*1024}')
    for d in range(1, 4):
        a.e(f's_waitcnt lgkmcnt({4*(3-d)})')
        for x in range(16):
            a.e(f'v_add_f32 v{T+x}, v{T+x}, v{T+16*d+x}')
    P = T + 16
    for r in range(4):
        for jp in range(2):
            a.e(f'v_cvt_pk_bf16_f32 v{P + 2*r + jp}, v{T + (2*jp)*4 + r}, v{T + (2*jp+1)*4 + r}')
    a.e('s_waitcnt vmcnt(0)')
    U = P + 8
    for x in range(8):
        a.e(f'v_lshlrev_b32 v{U+2*x}, 16, v{P+x}')
        a.e(f'v_and_b32 v{U+2*x+1}, 0xffff0000, v{P+x}')
        a.e(f'v_lshlrev_b32 v{U+16+2*x}, 16, v{RES+x}')
        a.e(f'v_and_b32 v{U+16+2*x+1}, 0xffff0000, v{RES+x}')
    for x in range(16):
        a.e(f'v_add_f32 v{U+x}, v{U+x}, v{U+16+x}')
    for x in range(8):
        a.e(f'v_cvt_pk_bf16_f32 v{P+x}, v{U+2*x}, v{U+2*x+1}')
    oo = 16 if out_rm else 512
    a.e(f'buffer_store_dwordx4 {vr(P,4)}, v{vE}, s[24:27], s45 offen')
    a.e(f'buffer_store_dwordx4 {vr(P+4,4)}, v{vE}, s[24:27], s45 offen offset:{oo}')
    a.label(f'{name}_end')
    a.e('s_endpgm')
    acc_off = ((NV + 3)//4)*4
    desc = kernel_desc(name, acc_off + NACC, 96, acc_off)
    return a.text(), desc, f'; @launch kernel={name} grid=(256,1,1) block=(256,1,1) lds=65536'
```

```python
from common import *
import math, struct

def f32bits(x): return struct.unpack('<I', struct.pack('<f', x))[0]

def gen_k4(name):
    a = Asm()
    NS = 4
    STG = 32768
    SCR = NS * STG
    LDS = SCR + 5120
    NWG = 224
    kernel_header(a, name)
    a.e(f's_cmp_ge_u32 s2, {NWG}')
    a.e(f's_cbranch_scc1 {name}_end')
    a.e(f's_load_dwordx2 s[4:5], s[0:1], {KA_WG}')
    a.e(f's_load_dwordx2 s[6:7], s[0:1], {KA_WU}')
    a.e(f's_load_dwordx2 s[8:9], s[0:1], {KA_WS}')
    a.e('v_lshrrev_b32 v1, 6, v0')
    a.e('v_and_b32 v0, 63, v0')
    a.e('v_readfirstlane_b32 s30, v1')
    a.e('s_and_b32 s31, s2, 7')
    a.e('s_lshr_b32 s32, s2, 3')
    a.e('s_lshr_b32 s33, s31, 1')
    a.e('s_lshl_b32 s33, s33, 2')
    a.e('s_and_b32 s34, s32, 3')
    a.e('s_add_u32 s33, s33, s34')
    a.e('s_and_b32 s34, s31, 1')
    a.e('s_mul_i32 s34, s34, 7')
    a.e('s_lshr_b32 s35, s32, 2')
    a.e('s_add_u32 s34, s34, s35')
    a.e('s_and_b32 s35, s30, 3')
    a.e('s_lshr_b32 s36, s30, 2')
    a.e('s_lshl_b32 s37, s33, 2')
    a.e('s_add_u32 s37, s37, s35')
    A0 = 8
    B0 = A0 + 128
    VT = B0 + 32
    vD, vOA, vS1a, vS1b, vS2a, vS2b, vONE = range(VT, VT+7)
    vTR = VT + 7
    vC = VT + 11
    NV = VT + 15
    NACC = 64
    acc_off = ((NV + 3)//4)*4
    assert acc_off + NACC <= 256, (acc_off, NACC)
    a.e('v_lshrrev_b32 v2, 4, v0')
    a.e(f'v_mul_u32_u24 v{vD}, 3584, v2')
    a.e('v_bfe_u32 v3, v0, 1, 3')
    a.e('v_lshlrev_b32 v4, 1, v2')
    a.e('v_xor_b32 v3, v3, v4')
    a.e('v_xor_b32 v3, s36, v3')
    a.e(f'v_lshl_add_u32 v{vD}, v3, 5, v{vD}')
    a.e('v_and_b32 v3, 1, v0')
    a.e(f'v_lshl_add_u32 v{vD}, v3, 4, v{vD}')
    a.e('v_bfe_u32 v2, v0, 4, 1')
    a.e('v_lshrrev_b32 v3, 5, v0')
    a.e('v_bfe_u32 v4, v0, 2, 2')
    a.e('v_lshl_add_u32 v5, v3, 3, v4')
    a.e('v_lshlrev_b32 v5, 8, v5')
    a.e('v_lshl_add_u32 v5, v2, 14, v5')
    a.e('s_lshl_b32 s38, s36, 2')
    a.e('v_lshlrev_b32 v6, 1, v4')
    a.e('v_xor_b32 v6, v6, v2')
    a.e('v_xor_b32 v6, s38, v6')
    a.e('v_lshl_add_u32 v5, v6, 5, v5')
    a.e('v_and_b32 v6, 3, v0')
    a.e(f'v_lshl_add_u32 v{vTR}, v6, 3, v5')
    for f in range(1, 4): a.e(f'v_xor_b32 v{vTR+f}, {f<<5}, v{vTR}')
    a.e(f'v_lshlrev_b32 v{vOA}, 4, v0')
    for r in (vS1a, vS1b, vS2a, vS2b, vC, vC+1, vC+2, vC+3): a.e(f'v_mov_b32 v{r}, 0')
    a.e(f'v_mov_b32 v{vONE}, 0x3f803f80')
    for i in range(NACC): a.e(f'v_accvgpr_write_b32 a{i}, 0')
    a.e('s_waitcnt lgkmcnt(0)')
    srd_off(a, 12, 8, WS_X1, S*D*2)
    a.e('s_cmp_eq_u32 s36, 0')
    a.e('s_cselect_b32 s4, s4, s6')
    a.e('s_cselect_b32 s5, s5, s7')
    srd(a, 16, 4, D*F*2)
    srd_off(a, 20, 8, WS_H, S*F*2)
    a.e('s_lshl_b32 s38, s37, 15')
    a.e(f's_mul_i32 s39, s35, {16*3584}')
    a.e('s_lshl_b32 s40, s34, 8')
    a.e('s_add_u32 s39, s39, s40')
    a.e('s_lshl_b32 s41, s36, 14')
    a.e('s_lshl_b32 s40, s35, 12')
    a.e('s_add_u32 s41, s41, s40')
    vm = VM()
    def dma(s):
        slot = s % NS
        for i in range(4):
            a.e(f's_add_u32 m0, s41, {slot*STG + i*1024}')
            a.e(f's_add_u32 s42, s39, {(s*64 + 4*i)*3584}')
            a.e(f'buffer_load_dwordx4 v{vD}, s[16:19], s42 offen lds'); vm.issue(('D', s))
    def aload(g):
        a.e(f's_add_u32 s43, s38, {g*4096}')
        for q in range(4):
            ks = 4*g+q
            a.e(f'buffer_load_dwordx4 {vr(A0+4*ks,4)}, v{vOA}, s[12:15], s43 offen offset:{q*1024}'); vm.issue(('A', g))
    for s in range(8):
        if s < NS: dma(s)
        aload(s)
    cur_hi = [0]
    def reads(step):
        s, k4 = divmod(step, 4)
        slot = s % NS
        out = []
        hi = slot >> 1
        if hi != cur_hi[0]:
            for f in range(4):
                out.append(f'v_add_u32 v{vTR+f}, {65536 if hi else -65536 & 0xffffffff:#x}, v{vTR+f}')
            cur_hi[0] = hi
        bs = B0 + 16*(step & 1)
        for f in range(4):
            for h2 in range(2):
                off = (slot & 1)*STG + k4*4096 + h2*1024
                out.append(f'ds_read_b64_tr_b16 {vr(bs + f*4 + 2*h2, 2)}, v{vTR+f} offset:{off}')
        return out
    a.e(f's_waitcnt vmcnt({vm.wait_n([("D", 0), ("A", 0)])})')
    a.e('s_barrier')
    for t in reads(0): a.e(t)
    for step in range(32):
        s, k4 = divmod(step, 4)
        a.e('s_waitcnt lgkmcnt(0)')
        rd = []
        if step < 31:
            if k4 == 3:
                a.e(f's_waitcnt vmcnt({vm.wait_n([("D", s+1), ("A", s+1)])})')
                a.e('s_barrier')
                if s + NS < 8: dma(s + NS)
            rd = reads(step + 1)
        bs = B0 + 16*(step & 1)
        xa = A0 + 4*step
        st = []
        for q in range(4):
            st.append(f'v_dot2_f32_bf16 v{(vS1a, vS1b)[q&1]}, v{xa+q}, v{vONE}, v{(vS1a, vS1b)[q&1]}')
            st.append(f'v_dot2_f32_bf16 v{(vS2a, vS2b)[q&1]}, v{xa+q}, v{xa+q}, v{(vS2a, vS2b)[q&1]}')
        for f in range(4):
            a.e(f'v_mfma_f32_32x32x16_bf16 a[{16*f}:{16*f+15}], {vr(bs+4*f,4)}, {vr(xa,4)}, a[{16*f}:{16*f+15}]')
            n = (len(rd) + (3 - f)) // (4 - f)
            for _ in range(n): a.e(rd.pop(0))
            for _ in range(2): a.e(st.pop(0))
        a.e(f's_cmp_lg_u32 s35, {k4}')
        a.e(f's_cbranch_scc1 {name}_cs{step}')
        for q in range(4):
            for f in range(4):
                a.e(f'v_dot2_f32_bf16 v{vC+f}, v{bs+4*f+q}, v{vONE}, v{vC+f}')
        a.label(f'{name}_cs{step}')
    E = A0
    vMB, vRS, vT0, vT1, vSA, vSR, vHA, vNM = range(E, E+8)
    a.e(f'v_add_f32 v{vS1a}, v{vS1a}, v{vS1b}')
    a.e(f'v_add_f32 v{vS2a}, v{vS2a}, v{vS2b}')
    ln_stats(a, vS1a, vS2a, vT0, vT1, vMB, vRS)
    for f in range(4):
        a.e(f'v_mov_b32 v{vT0}, v{vC+f}')
        a.e(f'v_permlane32_swap_b32 v{vT0}, v{vC+f}')
        a.e(f'v_add_f32 v{vC+f}, v{vC+f}, v{vT0}')
    a.e('s_lshl_b32 s44, s35, 10')
    a.e('s_lshl_b32 s45, s36, 9')
    a.e('s_add_u32 s44, s44, s45')
    a.e(f's_add_u32 s44, s44, {SCR}')
    a.e('v_and_b32 v2, 31, v0')
    a.e('v_lshlrev_b32 v2, 2, v2')
    a.e(f'v_add_u32 v{vSA}, s44, v2')
    for f in range(4):
        a.e(f'ds_write_b32 v{vSA}, v{vC+f} offset:{f*128}')
    a.e('s_waitcnt lgkmcnt(0)')
    a.e('s_barrier')
    a.e('s_lshl_b32 s44, s30, 7')
    a.e(f's_add_u32 s44, s44, {SCR}')
    a.e(f'v_add_u32 v{vSA}, s44, v2')
    for p in range(4):
        a.e(f'ds_read_b32 v{E+8+p}, v{vSA} offset:{p*1024}')
    a.e('s_waitcnt lgkmcnt(0)')
    a.e(f'v_add_f32 v{E+8}, v{E+8}, v{E+9}')
    a.e(f'v_add_f32 v{E+10}, v{E+10}, v{E+11}')
    a.e(f'v_add_f32 v{E+8}, v{E+8}, v{E+10}')
    a.e(f'ds_write_b32 v{vSA}, v{E+8} offset:4096')
    a.e('s_waitcnt lgkmcnt(0)')
    a.e('s_barrier')
    a.e('s_lshl_b32 s44, s36, 9')
    a.e(f's_add_u32 s44, s44, {SCR+4096}')
    a.e('v_lshrrev_b32 v3, 5, v0')
    a.e('v_lshlrev_b32 v3, 4, v3')
    a.e(f'v_add_u32 v{vSR}, s44, v3')
    CS = E + 16
    for f in range(4):
        for q in range(4):
            a.e(f'ds_read_b128 {vr(CS+16*f+4*q,4)}, v{vSR} offset:{f*128+q*32}')
    a.e('v_bfe_u32 v2, v0, 4, 1')
    a.e(f'v_mul_u32_u24 v{vHA}, 57344, v2')
    a.e('v_lshrrev_b32 v3, 5, v0')
    a.e(f'v_lshl_add_u32 v{vHA}, v3, 8, v{vHA}')
    a.e('v_and_b32 v3, 15, v0')
    a.e(f'v_lshl_add_u32 v{vHA}, v3, 4, v{vHA}')
    a.e(f's_mul_i32 s44, s37, {2*57344}')
    a.e('s_lshl_b32 s45, s34, 12')
    a.e('s_add_u32 s44, s44, s45')
    a.e('s_lshl_b32 s45, s36, 11')
    a.e('s_add_u32 s44, s44, s45')
    a.e(f'v_sub_f32 v{vNM}, 0, v{vMB}')
    k0 = -2.0 * math.sqrt(2.0/math.pi) * math.log2(math.e)
    vK0, vK1 = E+12, E+13
    a.e(f'v_mov_b32 v{vK0}, 0x{f32bits(k0):08x}')
    a.e(f'v_mov_b32 v{vK1}, 0x{f32bits(k0*0.044715):08x}')
    a.e('s_waitcnt lgkmcnt(0)')
    T = CS + 64
    for f in range(4):
        G = T; U = T + 8; Z = T + 16; O = T + 24 + 4*(f & 1)
        for r in range(16): a.e(f'v_accvgpr_read_b32 v{T+r}, a{16*f+r}')
        for r in range(16): a.e(f'v_fma_f32 v{T+r}, v{vNM}, v{CS+16*f+r}, v{T+r}')
        for r in range(16): a.e(f'v_mul_f32 v{T+r}, v{T+r}, v{vRS}')
        for r in range(8): a.e(f'v_mul_f32 v{Z+r}, v{G+r}, v{G+r}')
        for r in range(8): a.e(f'v_fma_f32 v{Z+r}, v{Z+r}, v{vK1}, v{vK0}')
        for r in range(8): a.e(f'v_mul_f32 v{Z+r}, v{Z+r}, v{G+r}')
        for r in range(8): a.e(f'v_exp_f32 v{Z+r}, v{Z+r}')
        for r in range(8): a.e(f'v_add_f32 v{Z+r}, 1.0, v{Z+r}')
        for r in range(8): a.e(f'v_rcp_f32 v{Z+r}, v{Z+r}')
        for r in range(8): a.e(f'v_mul_f32 v{G+r}, v{G+r}, v{U+r}')
        for r in range(8): a.e(f'v_mul_f32 v{G+r}, v{G+r}, v{Z+r}')
        for j in range(4): a.e(f'v_cvt_pk_bf16_f32 v{O+j}, v{G+2*j}, v{G+2*j+1}')
        a.e(f'buffer_store_dwordx4 {vr(O,4)}, v{vHA}, s[20:23], s44 offen offset:{f*512}')
    a.label(f'{name}_end')
    a.e('s_endpgm')
    desc = kernel_desc(name, acc_off + NACC, 96, acc_off)
    return a.text(), desc, f'; @launch kernel={name} grid=({NWG},1,1) block=(512,1,1) lds={LDS}'
```

```python
import sys
sys.path.insert(0, 'gen')
from common import *
from k1 import gen_k1
from k2 import gen_k2
from k35 import gen_k35
from k4 import gen_k4

HEADER = '''; interleave_layers__sliding_block__geglu_ffn__prompt  (generated by gen/gen.py)
'''
def build():
    ks = {}
    ks['k1a'] = gen_k1('k1a_kernel', 0)
    ks['k1b'] = gen_k1('k1b_kernel', 1)
    ks['k2'] = gen_k2('k2_kernel')
    ks['k3a'] = gen_k35('k3a_kernel', 'wo', 0)
    ks['k3b'] = gen_k35('k3b_kernel', 'wo', 1)
    ks['k4'] = gen_k4('k4_kernel')
    ks['k5a'] = gen_k35('k5a_kernel', 'down', 0)
    ks['k5b'] = gen_k35('k5b_kernel', 'down', 1)
    order = ['k1a', 'k2', 'k3a', 'k4', 'k5a', 'k1b', 'k2', 'k3b', 'k4', 'k5b']
    out = HEADER
    for k in order: out += ks[k][2] + '\n'
    out += '.amdgcn_target "amdgcn-amd-amdhsa--gfx950"\n.text\n'
    for k in ks: out += ks[k][0]
    for k in ks: out += ks[k][1]
    return out
if __name__ == '__main__':
    path = sys.argv[1] if len(sys.argv) > 1 else 'interleave_layers__sliding_block__geglu_ffn__prompt.s'
    open(path, 'w').write(build())
    print('wrote', path)
```

```python
from asmlib import *
MB = 1 << 20
WS_Q = 0; WS_K = 2*MB; WS_V = 4*MB; WS_O = 6*MB; WS_X1 = 8*MB; WS_H = 10*MB; WS_X2 = 18*MB
WS_ST1 = 20*MB; WS_ST2 = 21*MB
WS_CSQ = 22*MB
WS_CSG = 22*MB + 65536
WS_X0 = 23*MB; WS_ST0 = 25*MB
WS_PQKV = 26*MB; WS_PWO = 28*MB; WS_PGU = 29*MB; WS_PWD = 33*MB
WS_BYTES = 256*MB
S = 2048; D = 512; F = 1792
KA_X = 0; KA_WQKV = 8; KA_WO = 16; KA_WG = 32; KA_WU = 40; KA_WD = 48; KA_OUT = 56; KA_DBG = 64; KA_WS = 72

class VM:
    def __init__(self): self.q = []
    def issue(self, tag): self.q.append(tag)
    def wait_n(self, tags):
        last = -1
        for i, t in enumerate(self.q):
            if t in tags: last = i
        n = len(self.q) - 1 - last
        self.q = self.q[last+1:]
        return min(n, 63)

def srd(a, d, base, nbytes):
    a.e(f's_mov_b32 s{d}, s{base}')
    a.e(f's_and_b32 s{d+1}, s{base+1}, 0xffff')
    a.e(f's_mov_b32 s{d+2}, {nbytes}')
    a.e(f's_mov_b32 s{d+3}, 0x00020000')

def srd_off(a, d, base, off, nbytes):
    a.e(f's_add_u32 s{d}, s{base}, {off}')
    a.e(f's_addc_u32 s{d+1}, s{base+1}, 0')
    a.e(f's_and_b32 s{d+1}, s{d+1}, 0xffff')
    a.e(f's_mov_b32 s{d+2}, {nbytes}')
    a.e(f's_mov_b32 s{d+3}, 0x00020000')

def bf16_round(a, dst, src):
    a.e(f'v_cvt_pk_bf16_f32 v{dst}, v{src}, v{src}')
    a.e(f'v_lshlrev_b32 v{dst}, 16, v{dst}')

def ln_stats(a, s1, s2, t0, t1, mb, rstd):
    a.e(f'v_mov_b32 v{t0}, v{s1}')
    a.e(f'v_mov_b32 v{t1}, v{s2}')
    a.e(f'v_permlane32_swap_b32 v{t0}, v{s1}')
    a.e(f'v_permlane32_swap_b32 v{t1}, v{s2}')
    a.e(f'v_add_f32 v{s1}, v{s1}, v{t0}')
    a.e(f'v_add_f32 v{s2}, v{s2}, v{t1}')
    a.e(f'v_mul_f32 v{s1}, 0x3b000000, v{s1}')
    a.e(f'v_mul_f32 v{s2}, 0x3b000000, v{s2}')
    a.e(f'v_fma_f32 v{s2}, -v{s1}, v{s1}, v{s2}')
    a.e(f'v_max_f32 v{s2}, 0, v{s2}')
    bf16_round(a, mb, s1)
    bf16_round(a, t0, s2)
    a.e(f'v_add_f32 v{t0}, 0x3727c5ac, v{t0}')
    bf16_round(a, t0, t0)
    a.e(f'v_sqrt_f32 v{t0}, v{t0}')
    bf16_round(a, t0, t0)
    a.e(f'v_rcp_f32 v{rstd}, v{t0}')

WS_STAMP = 64*MB
class Stamps:
    def __init__(self, a, enabled, sbase=60, kid=0):
        self.a = a; self.on = enabled; self.n = 0; self.sbase = sbase; self.kid = kid
    def stamp(self):
        if not self.on: return
        assert self.n < 16
        self.a.e(f's_memtime s[{self.sbase+2*self.n}:{self.sbase+2*self.n+1}]')
        self.n += 1
    def dump(self, ws_sgpr, wave_sgpr, nwaves):
        if not self.on: return
        a = self.a
        a.e('s_waitcnt lgkmcnt(0) vmcnt(0)')
        srd_off(a, 56, ws_sgpr, WS_STAMP + self.kid*MB, MB)
        a.e(f's_mul_i32 s55, s2, {nwaves}')
        a.e(f's_add_u32 s55, s55, s{wave_sgpr}')
        a.e('s_lshl_b32 s55, s55, 6')
        a.e('v_mov_b32 v1, 0')
        for i in range(self.n):
            a.e(f'v_mov_b32 v2, s{self.sbase+2*i}')
            a.e(f'buffer_store_dword v2, v1, s[56:59], s55 offen offset:{4*i}')

def stats_from_partials(a, srd_s, soff_s, voff, T, s1, s2):
    for q in range(4):
        a.e(f'buffer_load_dwordx4 {vr(T+4*q,4)}, v{voff}, s[{srd_s}:{srd_s+3}], s{soff_s} offen offset:{16*q}')
def stats_sum(a, T, s1, s2):
    a.e(f'v_add_f32 v{s1}, v{T}, v{T+2}')
    a.e(f'v_add_f32 v{s2}, v{T+1}, v{T+3}')
    for q in range(2, 8):
        a.e(f'v_add_f32 v{s1}, v{s1}, v{T+2*q}')
        a.e(f'v_add_f32 v{s2}, v{s2}, v{T+2*q+1}')

def loader_loop(a, vm, dma, NSTG, NS, first_ahead=2, pre=None, post=None):
    issued = 0
    for s in range(NSTG):
        lim = min(NSTG, first_ahead + 2*s, max(NS, s - 1 + NS))
        while issued < lim:
            dma(issued); issued += 1
            if issued == 1 and pre: pre()
        a.e(f's_waitcnt vmcnt({vm.wait_n([("D", s)])})')
        a.e('s_barrier')
        if post: post(s)
    a.e('s_endpgm')
MAP35 = 0
MAP1 = 0
```

```python
from common import *

N_QKV, N_WO, N_GU, N_WD, N_X = 48, 16, 112, 56, 64
def gen_k0(name, dbg=False):
    a = Asm()
    NWG = N_QKV + N_WO + N_GU + N_WD + N_X
    kernel_header(a, name)
    a.e(f's_cmp_ge_u32 s2, {NWG}')
    a.e(f's_cbranch_scc1 {name}_end')
    a.e('s_load_dwordx4 s[4:7], s[0:1], 0')
    a.e('s_load_dwordx2 s[8:9], s[0:1], 16')
    a.e('s_load_dwordx4 s[40:43], s[0:1], 32')
    a.e('s_load_dwordx2 s[44:45], s[0:1], 48')
    a.e(f's_load_dwordx2 s[10:11], s[0:1], {KA_WS}')
    a.e('v_lshrrev_b32 v1, 6, v0')
    a.e('v_and_b32 v0, 63, v0')
    a.e('v_readfirstlane_b32 s30, v1')
    a.e('v_lshlrev_b32 v8, 4, v0')
    a.e('v_mov_b32 v9, 0x3f803f80')
    a.e('v_lshrrev_b32 v2, 3, v0')
    a.e('v_and_b32 v3, 7, v0')
    a.e('v_lshrrev_b32 v4, 5, v0')
    a.e('v_bfe_u32 v5, v0, 2, 2')
    a.e('v_bfe_u32 v6, v0, 4, 1')
    a.e('v_and_b32 v7, 3, v0')
    a.e('s_waitcnt lgkmcnt(0)')
    srd(a, 20, 10, 64*MB)
    b1 = N_GU; b2 = b1 + N_WD; b3 = b2 + N_QKV; b4 = b3 + N_X
    a.e(f's_cmp_lt_u32 s2, {b1}'); a.e(f's_cbranch_scc1 {name}_gu')
    a.e(f's_cmp_lt_u32 s2, {b2}'); a.e(f's_cbranch_scc1 {name}_wd')
    a.e(f's_cmp_lt_u32 s2, {b3}'); a.e(f's_cbranch_scc1 {name}_qkv')
    a.e(f's_cmp_lt_u32 s2, {b4}'); a.e(f's_cbranch_scc1 {name}_x')
    a.e(f's_branch {name}_wo')

    def plain(tag, base_id, sbase, nbytes, rowstride, perm, colsum):
        a.label(f'{name}_{tag}'); a.hist = []
        srd(a, 12, sbase, nbytes)
        a.e(f's_sub_u32 s31, s2, {base_id}')
        ncb = rowstride // 128
        if tag == 'qkv':
            a.e('s_and_b32 s32, s31, 1')
            a.e('s_lshr_b32 s33, s31, 1')
        else:
            a.e('s_and_b32 s33, s31, 7')
            a.e('s_lshr_b32 s32, s31, 3')
        a.e(f'v_mul_u32_u24 v10, {rowstride}, v2')
        a.e('v_lshl_add_u32 v10, v3, 4, v10')
        a.e(f's_mul_i32 s34, s32, {256*rowstride}')
        a.e(f's_mul_i32 s35, s30, {64*rowstride}')
        a.e('s_add_u32 s34, s34, s35')
        a.e('s_lshl_b32 s35, s33, 7')
        a.e('s_add_u32 s34, s34, s35')
        a.e('s_lshl_b32 s36, s30, 13')
        for i in range(8):
            a.e(f's_add_u32 m0, s36, {i*1024}')
            a.e(f's_add_u32 s37, s34, {i*8*rowstride}')
            a.e('buffer_load_dwordx4 v10, s[12:15], s37 offen lds')
        a.e(f'v_lshl_add_u32 v11, v4, {2 if perm else 3}, v5')
        a.e('v_lshlrev_b32 v11, 7, v11')
        a.e('v_lshl_add_u32 v11, v6, 5, v11')
        a.e('v_lshl_add_u32 v11, v7, 3, v11')
        a.e('v_add_u32 v11, s36, v11')
        second = 1024 if perm else 512
        if tag == 'qkv':
            a.e('s_and_b32 s38, s33, 7')
            a.e('s_mul_i32 s38, s38, 196608')
            a.e('s_lshr_b32 s39, s33, 3')
            a.e('s_lshl_b32 s39, s39, 11')
            a.e('s_add_u32 s38, s38, s39')
            ksb = 6144; dst = WS_PQKV
        else:
            KS = nbytes // (rowstride*16)
            a.e(f's_mul_i32 s38, s33, {KS*2048}')
            ksb = 2048; dst = WS_PWO if tag == 'wo' else WS_PWD
        a.e(f's_mul_i32 s39, s32, {16*ksb}')
        a.e('s_add_u32 s38, s38, s39')
        a.e(f's_mul_i32 s39, s30, {4*ksb}')
        a.e('s_add_u32 s38, s38, s39')
        a.e(f's_add_u32 s38, s38, {dst}')
        a.e('s_waitcnt vmcnt(0)')
        for k4 in range(4):
            for wn in range(2):
                fb = 16 + (k4*2+wn)*4
                a.e(f'ds_read_b64_tr_b16 {vr(fb,2)}, v11 offset:{k4*2048 + wn*64}')
                a.e(f'ds_read_b64_tr_b16 {vr(fb+2,2)}, v11 offset:{k4*2048 + wn*64 + second}')
        a.e('s_waitcnt lgkmcnt(0)')
        for k4 in range(4):
            a.e(f's_add_u32 s39, s38, {k4*ksb}')
            for wn in range(2):
                fb = 16 + (k4*2+wn)*4
                a.e(f'buffer_store_dwordx4 {vr(fb,4)}, v8, s[20:23], s39 offen offset:{wn*1024}')
        if colsum:
            a.e('v_mov_b32 v12, 0'); a.e('v_mov_b32 v13, 0')
            for k4 in range(4):
                for q in range(4):
                    for wn in range(2):
                        fb = 16 + (k4*2+wn)*4
                        a.e(f'v_dot2_f32_bf16 v{12+wn}, v{fb+q}, v9, v{12+wn}')
            for wn in range(2):
                a.e(f'v_mov_b32 v14, v{12+wn}')
                a.e(f'v_permlane32_swap_b32 v14, v{12+wn}')
                a.e(f'v_add_f32 v{12+wn}, v{12+wn}, v14')
            a.e('v_cmp_gt_u32 s[46:47], 32, v0')
            a.e('v_cndmask_b32 v12, v13, v12, s[46:47]')
            a.e('s_lshl_b32 s39, s30, 8')
            a.e('v_lshlrev_b32 v14, 2, v0')
            a.e('v_add_u32 v15, s39, v14')
            a.e('s_barrier')
            a.e('ds_write_b32 v15, v12 offset:32768')
            a.e('s_waitcnt lgkmcnt(0)')
            a.e('s_barrier')
            a.e('s_cmp_lg_u32 s30, 0')
            a.e(f's_cbranch_scc1 {name}_end')
            for p in range(4): a.e(f'ds_read_b32 v{16+p}, v14 offset:{32768 + p*256}')
            a.e('s_waitcnt lgkmcnt(0)')
            a.e('v_add_f32 v16, v16, v17'); a.e('v_add_f32 v18, v18, v19'); a.e('v_add_f32 v16, v16, v18')
            a.e('s_mul_i32 s38, s32, 6144')
            a.e('s_and_b32 s39, s33, 7')
            a.e('s_mul_i32 s39, s39, 768')
            a.e('s_add_u32 s38, s38, s39')
            a.e('s_lshr_b32 s39, s33, 3')
            a.e('s_lshl_b32 s39, s39, 8')
            a.e('s_add_u32 s38, s38, s39')
            a.e(f's_add_u32 s38, s38, {WS_CSQ}')
            a.e('buffer_store_dword v16, v14, s[20:23], s38 offen')
        a.e(f's_branch {name}_end')

    plain('wd', b1, 44, F*D*2, 1024, True, False)
    plain('qkv', b2, 6, D*3*D*2, 3072, False, True)
    plain('wo', b4, 8, D*D*2, 1024, True, False)

    a.label(f'{name}_gu'); a.hist = []
    srd(a, 12, 40, D*F*2)
    srd(a, 16, 42, D*F*2)
    a.e('s_and_b32 s32, s2, 3')
    a.e('s_lshr_b32 s33, s2, 2')
    a.e('v_mul_u32_u24 v10, 3584, v2')
    a.e('v_lshl_add_u32 v10, v3, 4, v10')
    a.e(f's_mul_i32 s34, s32, {128*3584}')
    a.e(f's_mul_i32 s35, s30, {32*3584}')
    a.e('s_add_u32 s34, s34, s35')
    a.e('s_lshl_b32 s35, s33, 7')
    a.e('s_add_u32 s34, s34, s35')
    a.e('s_lshl_b32 s36, s30, 13')
    for i in range(4):
        a.e(f's_add_u32 s37, s34, {i*8*3584}')
        a.e(f's_add_u32 m0, s36, {i*1024}')
        a.e('s_nop 0')
        a.e('buffer_load_dwordx4 v10, s[12:15], s37 offen lds')
        a.e(f's_add_u32 m0, s36, {4096 + i*1024}')
        a.e('s_nop 0')
        a.e('buffer_load_dwordx4 v10, s[16:19], s37 offen lds')
    a.e('v_lshl_add_u32 v11, v4, 3, v5')
    a.e('v_lshlrev_b32 v11, 7, v11')
    a.e('v_lshl_add_u32 v11, v6, 12, v11')
    a.e('v_lshl_add_u32 v11, v7, 3, v11')
    a.e('v_add_u32 v11, s36, v11')
    a.e('s_lshr_b32 s38, s33, 1')
    a.e('s_lshl_b32 s38, s38, 18')
    a.e('s_and_b32 s39, s33, 1')
    a.e('s_lshl_b32 s39, s39, 12')
    a.e('s_add_u32 s38, s38, s39')
    a.e('s_lshl_b32 s39, s32, 16')
    a.e('s_add_u32 s38, s38, s39')
    a.e('s_lshl_b32 s39, s30, 14')
    a.e('s_add_u32 s38, s38, s39')
    a.e(f's_add_u32 s38, s38, {WS_PGU}')
    a.e('s_waitcnt vmcnt(0)')
    for k2 in range(2):
        for u in range(4):
            fb = 16 + (k2*4+u)*4
            a.e(f'ds_read_b64_tr_b16 {vr(fb,2)}, v11 offset:{k2*2048 + u*32}')
            a.e(f'ds_read_b64_tr_b16 {vr(fb+2,2)}, v11 offset:{k2*2048 + u*32 + 512}')
    a.e('s_waitcnt lgkmcnt(0)')
    for k2 in range(2):
        a.e(f's_add_u32 s39, s38, {k2*8192}')
        for u in range(4):
            fb = 16 + (k2*4+u)*4
            a.e(f'buffer_store_dwordx4 {vr(fb,4)}, v8, s[20:23], s39 offen offset:{u*1024}')
    for u in range(4): a.e(f'v_mov_b32 v{48+u}, 0')
    for k2 in range(2):
        for q in range(4):
            for u in range(4):
                fb = 16 + (k2*4+u)*4
                a.e(f'v_dot2_f32_bf16 v{48+u}, v{fb+q}, v9, v{48+u}')
    for u in range(4):
        a.e(f'v_mov_b32 v14, v{48+u}')
        a.e(f'v_permlane32_swap_b32 v14, v{48+u}')
        a.e(f'v_add_f32 v{48+u}, v{48+u}, v14')
    a.e('v_cmp_gt_u32 s[46:47], 32, v0')
    a.e('v_cndmask_b32 v48, v49, v48, s[46:47]')
    a.e('v_cndmask_b32 v50, v51, v50, s[46:47]')
    a.e('s_lshl_b32 s39, s30, 9')
    a.e('v_lshlrev_b32 v14, 2, v0')
    a.e('v_add_u32 v15, s39, v14')
    a.e('ds_write_b32 v15, v48 offset:32768')
    a.e('ds_write_b32 v15, v50 offset:33024')
    a.e('s_waitcnt lgkmcnt(0)')
    a.e('s_barrier')
    a.e('s_cmp_ge_u32 s30, 2')
    a.e(f's_cbranch_scc1 {name}_end')
    a.e('s_lshl_b32 s39, s30, 8')
    a.e('v_add_u32 v15, s39, v14')
    for p in range(4): a.e(f'ds_read_b32 v{16+p}, v15 offset:{32768 + p*512}')
    a.e('s_waitcnt lgkmcnt(0)')
    a.e('v_add_f32 v16, v16, v17'); a.e('v_add_f32 v18, v18, v19'); a.e('v_add_f32 v16, v16, v18')
    a.e('s_mul_i32 s38, s32, 14336')
    a.e('s_lshl_b32 s39, s33, 9')
    a.e('s_add_u32 s38, s38, s39')
    a.e(f's_add_u32 s38, s38, {WS_CSG}')
    a.e('buffer_store_dword v16, v15, s[20:23], s38 offen')
    a.e(f's_branch {name}_end')

    a.label(f'{name}_x'); a.hist = []
    srd(a, 12, 4, S*D*2)
    a.e(f's_sub_u32 s31, s2, {b3}')
    a.e('s_lshl_b32 s34, s31, 15')
    a.e('s_lshl_b32 s36, s30, 13')
    a.e('s_add_u32 s34, s34, s36')
    a.e('s_lshl_b32 s35, s30, 3')
    for i in range(8):
        a.e(f's_add_u32 s37, s35, {i}')
        a.e('s_and_b32 s37, s37, 15')
        a.e('s_lshl_b32 s37, s37, 4')
        a.e(f'v_xor_b32 v{10+(i&1)}, s37, v8')
        a.e(f's_add_u32 m0, s36, {i*1024}')
        a.e(f's_add_u32 s37, s34, {i*1024}')
        a.e(f'buffer_load_dwordx4 v{10+(i&1)}, s[12:15], s37 offen lds')
    a.e('v_and_b32 v12, 31, v0')
    a.e('v_and_b32 v13, 15, v0')
    a.e('v_xor_b32 v13, v13, v4')
    a.e('v_lshlrev_b32 v13, 4, v13')
    a.e('v_lshl_add_u32 v12, v12, 10, v13')
    a.e('s_lshl_b32 s37, s30, 8')
    a.e('v_xor_b32 v12, s37, v12')
    a.e('s_waitcnt vmcnt(0)')
    a.e('s_barrier')
    for k8 in range(8):
        a.e(f'v_xor_b32 v{13+(k8&1)}, {k8<<5}, v12')
        a.e(f'ds_read_b128 {vr(16+4*k8,4)}, v{13+(k8&1)}')
    a.e(f's_add_u32 s38, s34, {WS_X0}')
    a.e('s_add_u32 s39, s38, 4096')
    a.e('v_mov_b32 v48, 0'); a.e('v_mov_b32 v49, 0')
    a.e('s_waitcnt lgkmcnt(0)')
    for k8 in range(8):
        a.e(f'buffer_store_dwordx4 {vr(16+4*k8,4)}, v8, s[20:23], s{38+(k8>>2)} offen offset:{(k8&3)*1024}')
    for x in range(32):
        a.e(f'v_dot2_f32_bf16 v48, v{16+x}, v9, v48')
        a.e(f'v_dot2_f32_bf16 v49, v{16+x}, v{16+x}, v49')
    a.e('v_mov_b32 v50, 0'); a.e('v_mov_b32 v51, 0')
    a.e('s_lshl_b32 s38, s31, 12')
    a.e('s_lshl_b32 s39, s30, 10')
    a.e('s_add_u32 s38, s38, s39')
    a.e(f's_add_u32 s38, s38, {WS_ST0}')
    a.e('buffer_store_dwordx4 v[48:51], v8, s[20:23], s38 offen')
    a.label(f'{name}_end')
    a.e('s_endpgm')
    desc = kernel_desc(name, 56, 64)
    return a.text(), desc, f'; @launch kernel={name} grid=({NWG},1,1) block=(256,1,1) lds=35840'
```

```python
from common import *

def gen_k1(name, layer, dbg=False):
    a = Asm()
    NS = 4
    STG = 32768
    SCR = NS * STG
    STL = SCR + 2048
    LDS = STL + 8192
    x_off, st_off = (WS_X0, WS_ST0) if layer == 0 else (WS_X2, WS_ST2)
    kernel_header(a, name)
    a.e('s_cmp_ge_u32 s2, 256')
    a.e(f's_cbranch_scc1 {name}_end')
    st_ = Stamps(a, dbg, kid=1); st_.stamp()
    a.e(f's_load_dwordx2 s[8:9], s[0:1], {KA_WS}')
    a.e('v_lshrrev_b32 v1, 6, v0')
    a.e('v_and_b32 v0, 63, v0')
    a.e('v_readfirstlane_b32 s30, v1')
    a.e('s_and_b32 s31, s2, 7')
    a.e('s_lshr_b32 s32, s2, 3')
    a.e('s_lshr_b32 s33, s31, 1')
    a.e('s_lshl_b32 s33, s33, 3')
    a.e('s_and_b32 s34, s32, 7')
    a.e('s_add_u32 s33, s33, s34')
    a.e('s_and_b32 s34, s31, 1')
    a.e('s_lshl_b32 s34, s34, 2')
    a.e('s_lshr_b32 s35, s32, 3')
    a.e('s_add_u32 s34, s34, s35')
    a.e('s_lshr_b32 s29, s30, 2')
    a.e('s_and_b32 s30, s30, 3')
    a.e('s_and_b32 s35, s30, 1')
    a.e('s_lshr_b32 s36, s30, 1')
    a.e('s_lshl_b32 s37, s33, 1')
    a.e('s_add_u32 s37, s37, s35')
    ACC = 8; FR = ACC + 48; VT = FR + 128
    vOA, vS1, vS2 = VT, VT+1, VT+2
    vAR = VT + 3; vWR = VT + 5
    NV = VT + 8
    a.e(f'v_lshlrev_b32 v{vOA}, 4, v0')
    a.e('s_cmp_eq_u32 s29, 0')
    a.e(f's_cbranch_scc1 {name}_comp')
    a.e('s_lshl_b32 s44, s37, 15')
    a.e('s_lshl_b32 s45, s36, 11')
    a.e('s_add_u32 s44, s44, s45')
    a.e(f's_add_u32 s44, s44, {x_off}')
    a.e('s_lshl_b32 s38, s35, 12')
    a.e('s_add_u32 s45, s45, s38')
    a.e('s_mul_i32 s39, s34, 196608')
    a.e('s_mul_i32 s41, s30, 6144')
    a.e('s_add_u32 s39, s39, s41')
    a.e(f's_add_u32 s39, s39, {WS_PQKV}')
    a.e('s_add_u32 s41, s41, 8192')
    a.e('s_lshl_b32 s46, s33, 13')
    a.e('s_lshl_b32 s47, s30, 11')
    a.e('s_add_u32 s46, s46, s47')
    a.e(f's_add_u32 s46, s46, {st_off}')
    a.e('s_mul_i32 s48, s34, 768')
    a.e(f's_add_u32 s48, s48, {WS_CSQ}')
    a.e('s_waitcnt lgkmcnt(0)')
    srd(a, 12, 8, 64*MB)
    vm = VM()
    def dma(s):
        slot = s % NS
        a.e(f's_add_u32 m0, s45, {slot*STG}')
        a.e(f's_add_u32 s42, s44, {s*4096}')
        a.e(f'buffer_load_dwordx4 v{vOA}, s[12:15], s42 offen lds'); vm.issue(('D', s))
        a.e(f'buffer_load_dwordx4 v{vOA}, s[12:15], s42 offen offset:1024 lds'); vm.issue(('D', s))
        for hf in range(2):
            a.e(f's_add_u32 m0, s41, {slot*STG + hf*3072}')
            a.e(f's_add_u32 s42, s39, {s*24576 + hf*3072}')
            for i in range(3):
                a.e(f'buffer_load_dwordx4 v{vOA}, s[12:15], s42 offen offset:{i*1024} lds'); vm.issue(('D', s))
        if s == 1:
            a.e(f's_add_u32 m0, s47, {STL}')
            a.e('s_nop 0')
            a.e(f'buffer_load_dwordx4 v{vOA}, s[12:15], s46 offen lds'); vm.issue(('D', 1))
            a.e(f'buffer_load_dwordx4 v{vOA}, s[12:15], s46 offen offset:1024 lds'); vm.issue(('D', 1))
            a.e(f'buffer_load_dwordx4 v[8:11], v{vOA}, s[12:15], s48 offen'); vm.issue(('D', 1))
            a.e('s_add_u32 s42, s48, 6144')
            a.e(f'buffer_load_dwordx4 v[12:15], v{vOA}, s[12:15], s42 offen'); vm.issue(('D', 1))
    def post(s):
        if s == 1:
            for i in range(4): a.e(f'v_add_f32 v{8+i}, v{8+i}, v{12+i}')
            a.e(f'v_add_u32 v2, {SCR+1024}, v{vOA}')
            a.e('ds_write_b128 v2, v[8:11]')
            a.e('s_waitcnt lgkmcnt(0)')
    loader_loop(a, vm, dma, 8, NS, post=post)
    a.label(f'{name}_comp'); a.hist = []
    st_.stamp()
    a.e('s_lshl_b32 s38, s35, 12')
    a.e(f'v_add_u32 v{vAR}, s38, v{vOA}')
    a.e(f'v_add_u32 v{vAR+1}, 65536, v{vAR}')
    a.e('s_lshl_b32 s39, s36, 10')
    a.e('s_add_u32 s39, s39, 8192')
    a.e(f'v_add_u32 v{vWR}, s39, v{vOA}')
    a.e(f'v_add_u32 v{vWR+1}, 65536, v{vWR}')
    for i in range(48): a.e(f'v_mov_b32 v{ACC+i}, 0')
    a.e('s_waitcnt lgkmcnt(0)')
    srd(a, 20, 8, 6*MB)
    def reads(s):
        slot = s % NS
        g, so = divmod(slot*STG, 65536)
        bs = FR + 64*(s & 1)
        out = []
        for k4 in range(4):
            fb = bs + 16*k4
            out.append(f'ds_read_b128 {vr(fb,4)}, v{vAR+g} offset:{so + k4*1024}')
            for p in range(3):
                out.append(f'ds_read_b128 {vr(fb+4+4*p,4)}, v{vWR+g} offset:{so + k4*6144 + p*2048}')
        return out
    a.e('s_barrier')
    st_.stamp()
    for t in reads(0): a.e(t)
    for s in range(8):
        a.e('s_waitcnt lgkmcnt(0)')
        rd = []
        if s < 7:
            a.e('s_barrier')
            rd = reads(s+1)
        bs = FR + 64*(s & 1)
        for k4 in range(4):
            fb = bs + 16*k4
            for p in range(3):
                wb = fb + 4 + 4*p
                acc = ACC + 16*p
                if p < 2: a.e(f'v_mfma_f32_32x32x16_bf16 {vr(acc,16)}, {vr(wb,4)}, {vr(fb,4)}, {vr(acc,16)}')
                else:     a.e(f'v_mfma_f32_32x32x16_bf16 {vr(acc,16)}, {vr(fb,4)}, {vr(wb,4)}, {vr(acc,16)}')
                for _ in range(2 if p < 1 else 1):
                    if rd: a.e(rd.pop(0))
        assert not rd
        if s == 7:
            pass
    st_.stamp()
    E = FR
    vMB, vRS, vT0, vT1, vSA, vSR, vVA, vC2 = range(E, E+8)
    CQ, CK, PT = E+8, E+24, E+40
    RM, RR = FR + 64, FR + 80
    a.e('v_and_b32 v2, 31, v0')
    a.e('v_lshlrev_b32 v2, 2, v2')
    a.e('v_lshrrev_b32 v3, 5, v0')
    a.e('v_lshlrev_b32 v3, 4, v3')
    a.e('v_lshlrev_b32 v4, 2, v2')
    a.e('v_lshl_add_u32 v4, v3, 7, v4')
    a.e(f's_add_u32 s46, s38, {STL}')
    a.e('v_add_u32 v4, s46, v4')
    for q in range(4):
        a.e(f'ds_read_b128 {vr(PT+4*q,4)}, v4 offset:{q*512}')
    a.e('s_lshl_b32 s46, s36, 7')
    a.e(f's_add_u32 s46, s46, {SCR+1024}')
    a.e('v_add_u32 v5, s46, v3')
    a.e('v_add_u32 v6, s46, v2')
    for p in range(2):
        for q in range(4):
            a.e(f'ds_read_b128 {vr((CQ,CK)[p]+4*q,4)}, v5 offset:{p*256+q*32}')
    a.e(f'ds_read_b32 v{vC2}, v6 offset:512')
    a.e('s_waitcnt lgkmcnt(9)')
    stats_sum(a, PT, vS1, vS2)
    ln_stats(a, vS1, vS2, vT0, vT1, vMB, vRS)
    a.e('s_lshl_b32 s44, s30, 8')
    a.e(f's_add_u32 s44, s44, {SCR}')
    a.e(f'v_add_u32 v{vSA}, s44, v2')
    a.e(f'v_add_u32 v{vSR}, s44, v3')
    a.e(f'ds_write_b32 v{vSA}, v{vMB}')
    a.e(f'ds_write_b32 v{vSA}, v{vRS} offset:128')
    for i, base in enumerate((RM, RR)):
        for q in range(4):
            a.e(f'ds_read_b128 {vr(base+4*q,4)}, v{vSR} offset:{i*128 + q*32}')
    a.e('s_lshl_b32 s45, s34, 2')
    a.e('s_lshl_b32 s46, s36, 1')
    a.e('s_add_u32 s45, s45, s46')
    a.e('s_lshl_b32 s45, s45, 16')
    a.e('s_lshl_b32 s46, s37, 10')
    a.e('s_add_u32 s45, s45, s46')
    a.e('v_bfe_u32 v2, v0, 4, 1')
    a.e(f'v_lshlrev_b32 v{vVA}, 16, v2')
    a.e('v_lshrrev_b32 v2, 5, v0')
    a.e(f'v_lshl_add_u32 v{vVA}, v2, 9, v{vVA}')
    a.e('v_and_b32 v2, 15, v0')
    a.e(f'v_lshl_add_u32 v{vVA}, v2, 4, v{vVA}')
    a.e(f'v_sub_f32 v{vT0}, 0, v{vMB}')
    O = FR + 96
    for p in range(2):
        cb = (CQ, CK)[p]; T = ACC + 16*p
        for r in range(16): a.e(f'v_fma_f32 v{T+r}, v{vT0}, v{cb+r}, v{T+r}')
        for r in range(16): a.e(f'v_mul_f32 v{T+r}, v{T+r}, v{vRS}')
        for r in range(8): a.e(f'v_cvt_pk_bf16_f32 v{O+r}, v{T+2*r}, v{T+2*r+1}')
        a.e(f's_add_u32 s46, s45, {p*2*MB}')
        a.e(f's_add_u32 s47, s46, 65536')
        a.e(f'buffer_store_dwordx4 {vr(O,4)}, v{vOA}, s[20:23], s46 offen')
        a.e(f'buffer_store_dwordx4 {vr(O+4,4)}, v{vOA}, s[20:23], s47 offen')
        O += 8
    a.e('s_waitcnt lgkmcnt(0)')
    a.e(f'v_sub_f32 v{vT1}, 0, v{vC2}')
    T = ACC + 32
    for r in range(16): a.e(f'v_fma_f32 v{T+r}, v{vT1}, v{RM+r}, v{T+r}')
    for r in range(16): a.e(f'v_mul_f32 v{T+r}, v{T+r}, v{RR+r}')
    for r in range(8): a.e(f'v_cvt_pk_bf16_f32 v{O+r}, v{T+2*r}, v{T+2*r+1}')
    a.e(f's_add_u32 s46, s45, {4*MB}')
    a.e(f'buffer_store_dwordx4 {vr(O,4)}, v{vVA}, s[20:23], s46 offen')
    a.e(f'buffer_store_dwordx4 {vr(O+4,4)}, v{vVA}, s[20:23], s46 offen offset:256')
    st_.stamp()
    if dbg:
        a.e('s_waitcnt vmcnt(0)'); st_.stamp(); st_.dump(8, 30, 4)
    a.label(f'{name}_end')
    a.e('s_endpgm')
    desc = kernel_desc(name, NV, 96)
    return a.text(), desc, f'; @launch kernel={name} grid=(256,1,1) block=(512,1,1) lds={LDS}'
```

```python
from common import *
import math

def gen_k2(name, dbg=False):
    a = Asm()
    kernel_header(a, name)
    a.e('s_cmp_ge_u32 s2, 256')
    a.e(f's_cbranch_scc1 {name}_end')
    st_ = Stamps(a, dbg, sbase=80, kid=2); st_.stamp()
    a.e(f's_load_dwordx2 s[8:9], s[0:1], {KA_WS}')
    a.e('v_lshrrev_b32 v1, 6, v0')
    a.e('v_and_b32 v0, 63, v0')
    a.e('v_readfirstlane_b32 s30, v1')
    a.e('s_and_b32 s31, s2, 7')
    a.e('s_lshl_b32 s31, s31, 2')
    a.e('s_bfe_u32 s32, s2, 0x20003')
    a.e('s_add_u32 s31, s31, s32')
    a.e('s_lshr_b32 s32, s2, 5')
    a.e('s_lshl_b32 s32, s32, 3')
    a.e('s_add_u32 s32, s32, s30')
    S0 = 8
    K0 = S0 + 144
    V0 = K0 + 36
    Q0 = V0 + 36
    M0 = Q0 + 4
    VT = M0 + 8
    vOA, vD, vMX, vT0, vT1, vNC, vCC, vONA = range(VT, VT+8)
    ONE = VT + 8
    NV = ONE + 4
    assert NV <= 256 and ONE % 2 == 0, NV
    ACC1, ACC2 = K0, K0 + 16
    ACCL = S0
    a.e(f'v_lshlrev_b32 v{vOA}, 4, v0')
    a.e('s_lshl_b32 s33, s31, 16')
    a.e('s_lshr_b32 s34, s2, 5')
    a.e('s_lshl_b32 s34, s34, 13')
    a.e('s_add_u32 s33, s33, s34')
    a.e('s_lshl_b32 s35, s30, 11')
    a.e('s_add_u32 s36, s33, s35')
    a.e('s_lshl_b32 s37, s30, 10')
    a.e('s_add_u32 s38, s33, s37')
    a.e(f'v_add_u32 v{vONA}, s37, v{vOA}')
    a.e('s_waitcnt lgkmcnt(0)')
    srd(a, 12, 8, 8*MB)
    a.e('s_add_u32 m0, s37, 32768')
    a.e('s_nop 0')
    a.e(f'buffer_load_dwordx4 v{vOA}, s[12:15], s38 offen lds')
    a.e('s_mov_b32 m0, s35')
    a.e(f's_add_u32 s39, s36, {WS_K - 8192}')
    a.e(f'buffer_load_dwordx4 v{vOA}, s[12:15], s39 offen lds')
    a.e(f'buffer_load_dwordx4 v{vOA}, s[12:15], s39 offen offset:1024 lds')
    a.e('s_add_u32 m0, s35, 16384')
    a.e(f's_add_u32 s39, s36, {WS_V - 8192}')
    a.e(f'buffer_load_dwordx4 v{vOA}, s[12:15], s39 offen lds')
    a.e(f'buffer_load_dwordx4 v{vOA}, s[12:15], s39 offen offset:1024 lds')
    order = [8, 7, 6, 5, 4, 3, 2, 1, 0]
    a.e('v_and_b32 v2, 31, v0')
    a.e('v_lshrrev_b32 v3, 5, v0')
    a.e('v_lshlrev_b32 v3, 2, v3')
    a.e(f'v_sub_u32 v{vD}, v2, v3')
    for r in range(16):
        kl = (r & 3) + 8*(r >> 2)
        a.e(f'v_cmp_le_i32 s[{48+2*r}:{49+2*r}], {kl}, v{vD}')
    a.e(f'v_mov_b32 v{vT0}, 0xffff')
    a.e(f'v_mov_b32 v{vT1}, 0xffff0000')
    for j in range(8):
        a.e(f'v_cndmask_b32 v2, 0, v{vT0}, s[{48+4*j}:{49+4*j}]')
        a.e(f'v_cndmask_b32 v3, 0, v{vT1}, s[{50+4*j}:{51+4*j}]')
        a.e(f'v_or_b32 v{M0+j}, v2, v3')
    for i in range(4): a.e(f'v_mov_b32 v{ONE+i}, 0x3f803f80')
    c = 0.25 * math.log2(math.e)
    import struct
    cbits = struct.unpack('<I', struct.pack('<f', c))[0]
    a.e(f'v_mov_b32 v{vCC}, 0x{cbits:08x}')
    st_.stamp()
    a.e('s_waitcnt vmcnt(0)')
    a.e('s_barrier')
    st_.stamp()
    a.e(f'ds_read_b128 {vr(Q0,4)}, v{vONA} offset:32768')
    for t in order:
        a.e(f'ds_read_b128 {vr(K0+4*t,4)}, v{vONA} offset:{t*1024}')
    for t in range(9):
        a.e(f'ds_read_b128 {vr(V0+4*t,4)}, v{vONA} offset:{16384 + t*1024}')
    for i, t in enumerate(order):
        a.e(f's_waitcnt lgkmcnt({min(15, 17 - i)})')
        a.e(f'v_mfma_f32_32x32x16_bf16 {vr(S0+16*t,16)}, {vr(K0+4*t,4)}, {vr(Q0,4)}, 0')
    a.e('s_waitcnt lgkmcnt(0)')
    a.e('s_nop 7'); a.e('s_nop 7')
    a.e('s_cmp_ge_u32 s32, 8')
    a.e(f's_cbranch_scc1 {name}_full')
    for t in range(8):
        a.e(f's_cmp_ge_u32 s32, {8-t}')
        a.e(f's_cbranch_scc1 {name}_full')
        for r in range(16): a.e(f'v_mov_b32 v{S0+16*t+r}, 0xff800000')
    a.label(f'{name}_full')
    st_.stamp()
    for r in range(16):
        a.e(f'v_cndmask_b32 v{S0+128+r}, v{S0+r}, v{S0+128+r}, s[{48+2*r}:{49+2*r}]')
    regs = list(range(S0+16, S0+144))
    a.e(f'v_max3_f32 v{vMX}, v{regs[0]}, v{regs[1]}, v{regs[2]}')
    a.e(f'v_max3_f32 v{vT0}, v{regs[3]}, v{regs[4]}, v{regs[5]}')
    i = 6
    tog = 0
    while i + 1 < len(regs):
        d = (vMX, vT0)[tog]; tog ^= 1
        a.e(f'v_max3_f32 v{d}, v{d}, v{regs[i]}, v{regs[i+1]}'); i += 2
    assert i == len(regs)
    a.e(f'v_max_f32 v{vMX}, v{vMX}, v{vT0}')
    a.e(f'v_mov_b32 v{vT0}, v{vMX}')
    a.e(f'v_permlane32_swap_b32 v{vT0}, v{vMX}')
    a.e(f'v_max_f32 v{vMX}, v{vMX}, v{vT0}')
    a.e(f'v_mul_f32 v{vNC}, v{vMX}, v{vCC}')
    a.e(f'v_sub_f32 v{vNC}, 0, v{vNC}')
    st_.stamp()
    first = True
    def pv(acc, vt, preg):
        srcc = '0' if first else vr(acc, 16)
        a.e(f'v_mfma_f32_32x32x16_bf16 {vr(acc,16)}, {vr(vt,4)}, {vr(preg,4)}, {srcc}')
    for t in list(range(1, 9)):
        b = S0 + 16*t
        for r in range(16):
            a.e(f'v_fma_f32 v{b+r}, v{b+r}, v{vCC}, v{vNC}')
        for r in range(16):
            a.e(f'v_exp_f32 v{b+r}, v{b+r}')
        for j in range(8):
            a.e(f'v_cvt_pk_bf16_f32 v{b+j}, v{b+2*j}, v{b+2*j+1}')
        if t < 8:
            pv(ACC1, V0+4*t, b); pv(ACC2, V0+4*t, b+4)
            srcc = '0' if first else vr(ACCL, 16)
            a.e(f'v_mfma_f32_32x32x16_bf16 {vr(ACCL,16)}, {vr(ONE,4)}, {vr(b,4)}, {srcc}')
            a.e(f'v_mfma_f32_32x32x16_bf16 {vr(ACCL,16)}, {vr(ONE,4)}, {vr(b+4,4)}, {vr(ACCL,16)}')
            first = False
        else:
            a.e(f'v_mfma_f32_32x32x16_bf16 {vr(ACCL,16)}, {vr(ONE,4)}, {vr(b,4)}, {vr(ACCL,16)}')
            a.e(f'v_mfma_f32_32x32x16_bf16 {vr(ACCL,16)}, {vr(ONE,4)}, {vr(b+4,4)}, {vr(ACCL,16)}')
            for j in range(8):
                a.e(f'v_and_b32 v{b+8+j}, v{b+j}, v{M0+j}')
            pv(ACC1, V0+32, b+8); pv(ACC2, V0+32, b+12)
            for j in range(8):
                a.e(f'v_xor_b32 v{S0+16+j}, v{b+j}, v{b+8+j}')
            pv(ACC1, V0, S0+16); pv(ACC2, V0, S0+20)
    st_.stamp()
    T = S0 + 32
    a.e('s_lshl_b32 s34, s32, 15')
    a.e('s_lshl_b32 s35, s31, 10')
    a.e('s_add_u32 s34, s34, s35')
    a.e(f's_add_u32 s34, s34, {WS_O}')
    a.e(f'v_rcp_f32 v{vT0}, v{ACCL}')
    for r in range(8):
        a.e(f'v_add_f32 v{T+r}, v{ACC1+r}, v{ACC2+8+r}')
    for r in range(8):
        a.e(f'v_mul_f32 v{T+r}, v{T+r}, v{vT0}')
    for j in range(4):
        a.e(f'v_cvt_pk_bf16_f32 v{T+8+j}, v{T+2*j}, v{T+2*j+1}')
    a.e(f'buffer_store_dwordx4 {vr(T+8,4)}, v{vOA}, s[12:15], s34 offen')
    st_.stamp()
    if dbg:
        a.e('s_waitcnt vmcnt(0)'); st_.stamp(); st_.dump(8, 30, 8)
    a.label(f'{name}_end')
    a.e('s_endpgm')
    desc = kernel_desc(name, NV, 100)
    return a.text(), desc, f'; @launch kernel={name} grid=(256,1,1) block=(512,1,1) lds=40960'
```

```python
from common import *

def gen_k35(name, which, layer, dbg=False):
    a = Asm()
    K = 512 if which == 'wo' else F
    NSTG = K // 64
    NU = K // 16
    STG = 16384
    NS = 8 if which == 'wo' else 9
    LDS = NS * STG
    kernel_header(a, name)
    a.e(f's_cmp_ge_u32 s2, 256')
    a.e(f's_cbranch_scc1 {name}_end')
    st_ = Stamps(a, dbg, kid=(3 if which == 'wo' else 5)); st_.stamp()
    a.e(f's_load_dwordx2 s[8:9], s[0:1], {KA_WS}')
    a.e(f's_load_dwordx2 s[10:11], s[0:1], {KA_OUT}')
    a.e('v_lshrrev_b32 v1, 6, v0')
    a.e('v_and_b32 v0, 63, v0')
    a.e('v_readfirstlane_b32 s30, v1')
    a.e('s_and_b32 s31, s2, 7')
    a.e('s_lshr_b32 s32, s2, 3')
    a.e('s_lshr_b32 s33, s31, 1')
    a.e('s_lshl_b32 s33, s33, 3')
    a.e('s_and_b32 s34, s32, 7')
    a.e('s_add_u32 s33, s33, s34')
    a.e('s_and_b32 s34, s31, 1')
    a.e('s_lshl_b32 s34, s34, 2')
    a.e('s_lshr_b32 s35, s32, 3')
    a.e('s_add_u32 s34, s34, s35')
    a.e('s_lshr_b32 s29, s30, 2')
    a.e('s_and_b32 s30, s30, 3')
    a.e('s_and_b32 s35, s30, 1')
    a.e('s_lshr_b32 s36, s30, 1')
    a.e('s_lshl_b32 s37, s33, 1')
    a.e('s_add_u32 s37, s37, s35')
    if which == 'wo':
        res_off = WS_X0 if layer == 0 else WS_X2; out_rm = False; out_off = WS_X1; a_off = WS_O; st_off = WS_ST1; w_off = WS_PWO
    else:
        res_off = WS_X1; out_rm = (layer == 1); out_off = WS_X2; a_off = WS_H; st_off = WS_ST2; w_off = WS_PWD
    ACC = 8; FR = ACC + 16; RES = FR + 64; VT = RES + 8
    vOA, vE, vONE = VT, VT+1, VT+2
    vAR = VT + 3; vWR = VT + 6
    T = VT + 10
    NV = T + 40
    a.e(f'v_lshlrev_b32 v{vOA}, 4, v0')
    a.e('s_cmp_eq_u32 s29, 0')
    a.e(f's_cbranch_scc1 {name}_comp')
    a.e(f's_mul_i32 s38, s37, {NU*1024}')
    a.e('s_lshl_b32 s39, s36, 11')
    a.e('s_add_u32 s38, s38, s39')
    a.e(f's_add_u32 s38, s38, {a_off}')
    a.e('s_lshl_b32 s40, s35, 12')
    a.e('s_add_u32 s40, s40, s39')
    a.e(f's_mul_i32 s41, s34, {NU*2048}')
    a.e('s_lshl_b32 s42, s30, 11')
    a.e('s_add_u32 s41, s41, s42')
    a.e(f's_add_u32 s41, s41, {w_off}')
    a.e('s_add_u32 s42, s42, 8192')
    a.e('s_waitcnt lgkmcnt(0)')
    srd(a, 12, 8, 64*MB)
    vm = VM()
    def dma(s):
        slot = s % NS
        a.e(f's_add_u32 m0, s42, {slot*STG}')
        a.e(f's_add_u32 s43, s41, {s*8192}')
        a.e(f'buffer_load_dwordx4 v{vOA}, s[12:15], s43 offen lds'); vm.issue(('D', s))
        a.e(f'buffer_load_dwordx4 v{vOA}, s[12:15], s43 offen offset:1024 lds'); vm.issue(('D', s))
        a.e(f's_add_u32 m0, s40, {slot*STG}')
        a.e(f's_add_u32 s43, s38, {s*4096}')
        a.e(f'buffer_load_dwordx4 v{vOA}, s[12:15], s43 offen lds'); vm.issue(('D', s))
        a.e(f'buffer_load_dwordx4 v{vOA}, s[12:15], s43 offen offset:1024 lds'); vm.issue(('D', s))
    loader_loop(a, vm, dma, NSTG, NS, first_ahead=3)
    a.label(f'{name}_comp'); a.hist = []
    st_.stamp()
    a.e('s_lshl_b32 s38, s35, 12')
    a.e(f'v_add_u32 v{vAR}, s38, v{vOA}')
    a.e('s_lshl_b32 s39, s36, 10')
    a.e('s_add_u32 s39, s39, 8192')
    a.e(f'v_add_u32 v{vWR}, s39, v{vOA}')
    for g in (1, 2):
        a.e(f'v_add_u32 v{vAR+g}, {g*65536}, v{vAR}')
        a.e(f'v_add_u32 v{vWR+g}, {g*65536}, v{vWR}')
    a.e('s_lshl_b32 s44, s37, 15')
    a.e('s_lshl_b32 s39, s34, 12')
    a.e('s_add_u32 s44, s44, s39')
    a.e('s_lshl_b32 s39, s36, 11')
    a.e('s_add_u32 s44, s44, s39')
    if out_rm:
        a.e('v_and_b32 v2, 31, v0')
        a.e('v_lshrrev_b32 v3, 5, v0')
        a.e('v_lshlrev_b32 v2, 10, v2')
        a.e(f'v_lshl_add_u32 v{vE}, v3, 4, v2')
        a.e('s_lshl_b32 s45, s37, 15')
        a.e('s_lshl_b32 s39, s34, 7')
        a.e('s_add_u32 s45, s45, s39')
        a.e('s_lshl_b32 s39, s36, 6')
        a.e('s_add_u32 s45, s45, s39')
    else:
        a.e(f'v_mov_b32 v{vE}, v{vOA}')
        a.e(f's_add_u32 s45, s44, {out_off}')
    a.e(f's_add_u32 s44, s44, {res_off}')
    for i in range(16): a.e(f'v_mov_b32 v{ACC+i}, 0')
    a.e(f'v_mov_b32 v{vONE}, 0x3f803f80')
    a.e('s_waitcnt lgkmcnt(0)')
    srd(a, 20, 8, 64*MB)
    if out_rm: srd(a, 24, 10, S*D*2)
    else: srd(a, 24, 8, 64*MB)
    a.e(f'buffer_load_dwordx4 {vr(RES,4)}, v{vOA}, s[20:23], s44 offen')
    a.e(f'buffer_load_dwordx4 {vr(RES+4,4)}, v{vOA}, s[20:23], s44 offen offset:1024')
    def reads(s):
        slot = s % NS
        g, so = divmod(slot*STG, 65536)
        out = []
        for k4 in range(4):
            fb = FR + 32*(s & 1) + 8*k4
            out.append(f'ds_read_b128 {vr(fb,4)}, v{vAR+g} offset:{so + k4*1024}')
            out.append(f'ds_read_b128 {vr(fb+4,4)}, v{vWR+g} offset:{so + k4*2048}')
        return out
    a.e('s_barrier')
    st_.stamp()
    for t in reads(0): a.e(t)
    for s in range(NSTG):
        a.e('s_waitcnt lgkmcnt(0)')
        rd = []
        if s + 1 < NSTG:
            a.e('s_barrier')
            rd = reads(s+1)
        for k4 in range(4):
            fb = FR + 32*(s & 1) + 8*k4
            a.e(f'v_mfma_f32_32x32x16_bf16 {vr(ACC,16)}, {vr(fb+4,4)}, {vr(fb,4)}, {vr(ACC,16)}')
            for _ in range(2):
                if rd: a.e(rd.pop(0))
    st_.stamp()
    P = T
    for j in range(8):
        a.e(f'v_cvt_pk_bf16_f32 v{P+j}, v{ACC+2*j}, v{ACC+2*j+1}')
    a.e(f'v_permlane32_swap_b32 v{P}, v{P+2}')
    a.e(f'v_permlane32_swap_b32 v{P+1}, v{P+3}')
    a.e(f'v_permlane32_swap_b32 v{P+4}, v{P+6}')
    a.e(f'v_permlane32_swap_b32 v{P+5}, v{P+7}')
    a.e('s_waitcnt vmcnt(0)')
    U = P + 8
    for x in range(8):
        a.e(f'v_lshlrev_b32 v{U+2*x}, 16, v{P+x}')
        a.e(f'v_and_b32 v{U+2*x+1}, 0xffff0000, v{P+x}')
        a.e(f'v_lshlrev_b32 v{U+16+2*x}, 16, v{RES+x}')
        a.e(f'v_and_b32 v{U+16+2*x+1}, 0xffff0000, v{RES+x}')
    for x in range(16):
        a.e(f'v_add_f32 v{U+x}, v{U+x}, v{U+16+x}')
    for x in range(8):
        a.e(f'v_cvt_pk_bf16_f32 v{P+x}, v{U+2*x}, v{U+2*x+1}')
    oo = 32 if out_rm else 1024
    a.e(f'buffer_store_dwordx4 {vr(P,4)}, v{vE}, s[24:27], s45 offen')
    a.e(f'buffer_store_dwordx4 {vr(P+4,4)}, v{vE}, s[24:27], s45 offen offset:{oo}')
    if not out_rm:
        s1, s2, t0, t1 = U, U+1, U+2, U+3
        a.e(f'v_mov_b32 v{s1}, 0'); a.e(f'v_mov_b32 v{s2}, 0')
        for x in range(8):
            a.e(f'v_dot2_f32_bf16 v{s1}, v{P+x}, v{vONE}, v{s1}')
            a.e(f'v_dot2_f32_bf16 v{s2}, v{P+x}, v{P+x}, v{s2}')
        a.e(f'v_mov_b32 v{t0}, v{s1}'); a.e(f'v_mov_b32 v{t1}, v{s2}')
        a.e(f'v_permlane32_swap_b32 v{t0}, v{s1}')
        a.e(f'v_permlane32_swap_b32 v{t1}, v{s2}')
        a.e(f'v_add_f32 v{s1}, v{s1}, v{t0}')
        a.e(f'v_add_f32 v{s2}, v{s2}, v{t1}')
        a.e('v_and_b32 v2, 31, v0')
        a.e('v_lshlrev_b32 v2, 4, v2')
        a.e('s_lshl_b32 s46, s37, 12')
        a.e('s_lshl_b32 s47, s34, 9')
        a.e('s_add_u32 s46, s46, s47')
        a.e('s_lshl_b32 s47, s36, 3')
        a.e('s_add_u32 s46, s46, s47')
        a.e(f's_add_u32 s46, s46, {st_off}')
        a.e(f'buffer_store_dwordx2 {vr(s1,2)}, v2, s[20:23], s46 offen')
    st_.stamp()
    if dbg:
        a.e('s_waitcnt vmcnt(0)'); st_.stamp(); st_.dump(8, 30, 4)
    a.label(f'{name}_end')
    a.e('s_endpgm')
    desc = kernel_desc(name, NV, 96)
    return a.text(), desc, f'; @launch kernel={name} grid=(256,1,1) block=(512,1,1) lds={LDS}'
```

```python
from common import *
import math, struct

def f32bits(x): return struct.unpack('<I', struct.pack('<f', x))[0]

def gen_k4(name, dbg=False):
    a = Asm()
    NS = 3
    STG = 49152
    STL = NS * STG
    LDS = STL + 16384
    NWG = 224
    kernel_header(a, name)
    a.e(f's_cmp_ge_u32 s2, {NWG}')
    a.e(f's_cbranch_scc1 {name}_end')
    st_ = Stamps(a, dbg, kid=4); st_.stamp()
    a.e(f's_load_dwordx2 s[8:9], s[0:1], {KA_WS}')
    a.e('v_lshrrev_b32 v1, 6, v0')
    a.e('v_and_b32 v0, 63, v0')
    a.e('v_readfirstlane_b32 s30, v1')
    a.e('s_and_b32 s31, s2, 7')
    a.e('s_lshr_b32 s32, s2, 3')
    a.e('s_lshr_b32 s33, s31, 1')
    a.e('s_mul_i32 s33, s33, 28')
    a.e('s_add_u32 s32, s32, s33')
    a.e('s_lshr_b32 s34, s32, 3')
    a.e('s_and_b32 s33, s32, 7')
    a.e('s_and_b32 s31, s31, 1')
    a.e('s_lshl_b32 s31, s31, 3')
    a.e('s_add_u32 s33, s33, s31')
    a.e('s_lshr_b32 s29, s30, 3')
    a.e('s_and_b32 s28, s30, 3')
    a.e('s_and_b32 s30, s30, 7')
    a.e('s_and_b32 s35, s30, 1')
    a.e('s_lshr_b32 s36, s30, 1')
    a.e('s_lshl_b32 s37, s33, 2')
    a.e('s_lshl_b32 s38, s35, 1')
    a.e('s_add_u32 s37, s37, s38')
    ACC = 8; FR = ACC + 64; VT = FR + 48
    vOA, vMB0, vMB1, vRS0, vRS1, vK0, vK1, vSD0, vSD1 = range(VT, VT+9)
    vWR = VT + 9; vAR = VT + 12
    T = VT + 16; PT = VT + 20
    NV = PT + 16
    CS2 = FR + 16
    assert NV <= 168
    a.e(f'v_lshlrev_b32 v{vOA}, 4, v0')
    a.e('s_cmp_eq_u32 s29, 0')
    a.e(f's_cbranch_scc1 {name}_comp')
    a.e('s_lshl_b32 s42, s34, 18')
    a.e('s_lshl_b32 s43, s28, 13')
    a.e('s_add_u32 s42, s42, s43')
    a.e(f's_add_u32 s42, s42, {WS_PGU}')
    a.e('s_add_u32 s41, s43, 16384')
    a.e('s_lshl_b32 s43, s28, 12')
    a.e('s_lshl_b32 s44, s33, 2')
    a.e('s_add_u32 s44, s44, s28')
    a.e('s_lshl_b32 s45, s44, 12')
    a.e(f's_add_u32 s45, s45, {WS_ST1}')
    a.e('s_lshl_b32 s44, s44, 15')
    a.e(f's_add_u32 s44, s44, {WS_X1}')
    a.e('s_lshl_b32 s46, s34, 10')
    a.e(f's_add_u32 s46, s46, {WS_CSG}')
    a.e('s_waitcnt lgkmcnt(0)')
    srd(a, 12, 8, 64*MB)
    vm = VM()
    def dma(s):
        slot = s % NS
        a.e(f's_add_u32 m0, s43, {slot*STG}')
        a.e(f's_add_u32 s47, s44, {s*4096}')
        for i in range(4):
            a.e(f'buffer_load_dwordx4 v{vOA}, s[12:15], s47 offen offset:{i*1024} lds'); vm.issue(('D', s))
        for hf in range(2):
            a.e(f's_add_u32 m0, s41, {slot*STG + hf*4096}')
            a.e(f's_add_u32 s47, s42, {s*32768 + hf*4096}')
            for i in range(4):
                a.e(f'buffer_load_dwordx4 v{vOA}, s[12:15], s47 offen offset:{i*1024} lds'); vm.issue(('D', s))
        if s == 1:
            a.e(f's_add_u32 m0, s43, {STL}')
            a.e('s_nop 0')
            for i in range(4):
                a.e(f'buffer_load_dwordx4 v{vOA}, s[12:15], s45 offen offset:{i*1024} lds'); vm.issue(('D', 1))
        if s == 2:
            for p in range(4):
                a.e(f's_add_u32 s47, s46, {p*14336}')
                a.e(f'buffer_load_dwordx4 {vr(8+4*p,4)}, v{vOA}, s[12:15], s47 offen'); vm.issue(('D', 2))
    def post(s):
        if s == 6:
            for i in range(4):
                a.e(f'v_add_f32 v{8+i}, v{8+i}, v{12+i}')
                a.e(f'v_add_f32 v{16+i}, v{16+i}, v{20+i}')
                a.e(f'v_add_f32 v{8+i}, v{8+i}, v{16+i}')
            a.e(f'v_add_u32 v2, {2*STG}, v{vOA}')
            a.e('ds_write_b128 v2, v[8:11]')
            a.e('s_waitcnt lgkmcnt(0)')
    loader_loop(a, vm, dma, 8, NS, post=post)
    a.label(f'{name}_comp'); a.hist = []
    st_.stamp()
    a.e('s_lshl_b32 s41, s35, 13')
    a.e(f'v_add_u32 v{vAR}, s41, v{vOA}')
    a.e('s_lshl_b32 s41, s36, 11')
    a.e('s_add_u32 s41, s41, 16384')
    a.e(f'v_add_u32 v{vWR}, s41, v{vOA}')
    for sl in (1, 2):
        a.e(f'v_add_u32 v{vWR+sl}, {sl*STG}, v{vWR}')
        a.e(f'v_add_u32 v{vAR+sl}, {sl*STG}, v{vAR}')
    for i in range(64): a.e(f'v_mov_b32 v{ACC+i}, 0')
    a.e('v_lshrrev_b32 v3, 5, v0')
    a.e('v_and_b32 v2, 31, v0')
    a.e('v_lshlrev_b32 v2, 4, v2')
    a.e('v_lshl_add_u32 v2, v3, 11, v2')
    a.e('s_lshl_b32 s46, s35, 13')
    a.e(f's_add_u32 s46, s46, {STL}')
    a.e('v_add_u32 v2, s46, v2')
    a.e('v_lshlrev_b32 v4, 4, v3')
    a.e('s_lshl_b32 s47, s36, 8')
    a.e(f's_add_u32 s47, s47, {2*STG}')
    a.e('v_add_u32 v4, s47, v4')
    k0 = -2.0 * math.sqrt(2.0/math.pi) * math.log2(math.e)
    a.e(f'v_mov_b32 v{vK0}, 0x{f32bits(k0):08x}')
    a.e(f'v_mov_b32 v{vK1}, 0x{f32bits(k0*0.044715):08x}')
    a.e(f's_mul_i32 s44, s37, {112*1024}')
    a.e('s_lshl_b32 s45, s34, 13')
    a.e('s_add_u32 s44, s44, s45')
    a.e('s_lshl_b32 s45, s36, 11')
    a.e('s_add_u32 s44, s44, s45')
    a.e(f's_add_u32 s44, s44, {WS_H}')
    a.e(f's_add_u32 s45, s44, {112*1024}')
    a.e('s_waitcnt lgkmcnt(0)')
    srd(a, 20, 8, 64*MB)
    def reads(step):
        s, k4 = divmod(step, 4)
        slot = s % NS
        fb = FR + 16*(step % 3)
        out = []
        for b in range(2):
            out.append(f'ds_read_b128 {vr(fb+4*b,4)}, v{vAR+slot} offset:{b*4096 + k4*1024}')
        for f in range(2):
            out.append(f'ds_read_b128 {vr(fb+8+4*f,4)}, v{vWR+slot} offset:{k4*8192 + f*1024}')
        return out
    a.e('s_barrier')
    st_.stamp()
    for t in reads(0): a.e(t)
    for t in reads(1): a.e(t)
    extra = [0]
    for step in range(32):
        s, k4 = divmod(step, 4)
        rd = []
        if step + 2 < 32:
            if k4 == 2:
                a.e('s_waitcnt lgkmcnt(0)')
                a.e('s_barrier')
                st_.stamp()
            else:
                a.e('s_waitcnt lgkmcnt(%d)' % (0 if extra[0] else 4)); extra[0] = 0
            rd = reads(step + 2)
        elif step + 1 < 32:
            a.e('s_waitcnt lgkmcnt(4)')
        else:
            a.e('s_waitcnt lgkmcnt(0)')
        fb = FR + 16*(step % 3)
        for b in range(2):
            for f in range(2):
                acc = ACC + 32*b + 16*f
                a.e(f'v_mfma_f32_32x32x16_bf16 {vr(acc,16)}, {vr(fb+8+4*f,4)}, {vr(fb+4*b,4)}, {vr(acc,16)}')
                if rd: a.e(rd.pop(0))
        assert not rd
        if step in (12, 16):
            b = 0 if step == 12 else 1
            for q in range(4):
                a.e(f'ds_read_b128 {vr(PT+4*q,4)}, v2 offset:{b*4096 + q*512}')
            extra[0] = 4
        if step in (13, 17):
            b = 0 if step == 13 else 1
            s1, s2, t0, t1 = T, T+1, T+2, T+3
            stats_sum(a, PT, s1, s2)
            ln_stats(a, s1, s2, t0, t1, (vMB0, vMB1)[b], (vRS0, vRS1)[b])
            a.e(f'v_mov_b32 v{(vSD0, vSD1)[b]}, v{t0}')
            a.e(f'v_sub_f32 v{(vMB0, vMB1)[b]}, 0, v{(vMB0, vMB1)[b]}')
    st_.stamp()
    for f in range(2):
        for q in range(4):
            a.e(f'ds_read_b128 {vr(CS2+16*f+4*q,4)}, v4 offset:{f*128+q*32}')
    a.e('s_waitcnt lgkmcnt(0)')
    for b in range(2):
        rs = (vRS0, vRS1)[b]
        for f in range(2):
            G = ACC + 32*b + 16*f; U = G + 8; Z = FR + 8*(f & 1); O = PT + 4*(2*b+f)
            nm = (vMB0, vMB1)[b]; sd = (vSD0, vSD1)[b]
            for r in range(16): a.e(f'v_fma_f32 v{G+r}, v{nm}, v{CS2+16*f+r}, v{G+r}')
            for r in range(8): a.e(f'v_mul_f32 v{G+r}, v{G+r}, v{rs}')
            for r in range(8): a.e(f'v_mul_f32 v{Z+r}, v{G+r}, v{G+r}')
            for r in range(8): a.e(f'v_fma_f32 v{Z+r}, v{Z+r}, v{vK1}, v{vK0}')
            for r in range(8): a.e(f'v_mul_f32 v{Z+r}, v{Z+r}, v{G+r}')
            for r in range(8): a.e(f'v_exp_f32 v{Z+r}, v{Z+r}')
            for r in range(8): a.e(f'v_mul_f32 v{G+r}, v{G+r}, v{U+r}')
            for r in range(8): a.e(f'v_fma_f32 v{Z+r}, v{Z+r}, v{sd}, v{sd}')
            for r in range(8): a.e(f'v_rcp_f32 v{Z+r}, v{Z+r}')
            for r in range(8): a.e(f'v_mul_f32 v{G+r}, v{G+r}, v{Z+r}')
            for j in range(4): a.e(f'v_cvt_pk_bf16_f32 v{O+j}, v{G+2*j}, v{G+2*j+1}')
            a.e(f'buffer_store_dwordx4 {vr(O,4)}, v{vOA}, s[20:23], s{44+b} offen offset:{f*1024}')
    st_.stamp()
    if dbg:
        a.e('s_waitcnt vmcnt(0)'); st_.stamp(); st_.dump(8, 30, 8)
    a.label(f'{name}_end')
    a.e('s_endpgm')
    desc = kernel_desc(name, NV, 96)
    return a.text(), desc, f'; @launch kernel={name} grid=({NWG},1,1) block=(768,1,1) lds={LDS}'
```

```python
import sys
sys.path.insert(0, 'gen')
from common import *
from k0 import gen_k0
from k1 import gen_k1
from k2 import gen_k2
from k35 import gen_k35
from k4 import gen_k4

HEADER = '''; interleave_layers__sliding_block__geglu_ffn__prompt  (generated by gen/gen.py)
'''
def build(dbg=False):
    ks = {}
    ks['k0'] = gen_k0('k0_kernel', dbg)
    ks['k1a'] = gen_k1('k1a_kernel', 0, dbg)
    ks['k1b'] = gen_k1('k1b_kernel', 1, dbg)
    ks['k2'] = gen_k2('k2_kernel', dbg)
    ks['k3a'] = gen_k35('k3a_kernel', 'wo', 0, dbg)
    ks['k3b'] = gen_k35('k3b_kernel', 'wo', 1, dbg)
    ks['k4'] = gen_k4('k4_kernel', dbg)
    ks['k5a'] = gen_k35('k5a_kernel', 'down', 0, dbg)
    ks['k5b'] = gen_k35('k5b_kernel', 'down', 1, dbg)
    order = ['k0', 'k1a', 'k2', 'k3a', 'k4', 'k5a', 'k1b', 'k2', 'k3b', 'k4', 'k5b']
    out = HEADER
    for k in order: out += ks[k][2] + '\n'
    out += '.amdgcn_target "amdgcn-amd-amdhsa--gfx950"\n.text\n'
    for k in ks: out += ks[k][0]
    for k in ks: out += ks[k][1]
    return out
if __name__ == '__main__':
    import common, os
    common.MAP35 = int(os.environ.get('MAP35', '0')); common.MAP1 = int(os.environ.get('MAP1', '0'))
    path = sys.argv[1] if len(sys.argv) > 1 else 'interleave_layers__sliding_block__geglu_ffn__prompt.s'
    open(path, 'w').write(build(dbg=(len(sys.argv) > 2)))
    print('wrote', path)
```
